```python
import torch

def _softmax(x, axis=-1):
    return torch.softmax(x, dim=axis)
def _gelu(x):
    return torch.nn.functional.gelu(x, approximate="tanh")
def _silu(x):
    return torch.nn.functional.silu(x)
def _sigmoid(x):
    return torch.sigmoid(x)
def _layernorm(x, axis=-1, eps=1e-5):
    m = x.mean(dim=axis, keepdim=True)
    v = x.var(dim=axis, keepdim=True, unbiased=False)
    return (x - m) / torch.sqrt(v + eps)
def _scatter_add(tgt, idx, src, axis=0):
    return tgt.clone().index_add_(axis, idx, src)
def _segment_sum(src, seg, n):
    out = torch.zeros((n,) + src.shape[1:], dtype=src.dtype)
    return out.index_add_(0, seg, src)
def _pad(x, pw):
    flat = tuple(v for pair in reversed(pw) for v in pair)
    return torch.nn.functional.pad(x, flat)

kernel_name = 'interleave_layers__ssm_conv_s4d__dense_activation_mish__prompt'

def setup_inputs():

    _w = (lambda a: (lambda t: t.to(torch.bfloat16) if t.is_floating_point() else t)(torch.as_tensor(a)))
    def _A_setup():
        Bsz, L, D, N = 1, 2048, 512, 128
        return {
            "u": _w((lambda *s: torch.randn(*s, dtype=torch.bfloat16) * 0.05)(Bsz, L, D)),
            "log_A_real": _w((lambda *s: torch.randn(*s, dtype=torch.bfloat16) * 3.2)(D, N) * 0.5),
            "A_imag": _w((lambda *s: torch.randn(*s, dtype=torch.bfloat16) * 0.05)(D, N) * 3.14),
            "C_real": _w((lambda *s: torch.randn(*s, dtype=torch.bfloat16) * 0.05)(D, N) / N ** 0.5),
            "C_imag": _w((lambda *s: torch.randn(*s, dtype=torch.bfloat16) * 0.05)(D, N) / N ** 0.5),
            "log_dt": _w((lambda *s: torch.randn(*s, dtype=torch.bfloat16) * 0.05)(D) * 0.5 - 4.0),
            "D_skip": _w((lambda *s: torch.randn(*s, dtype=torch.bfloat16) * 0.05)(D)),
        }
    _A_in = _A_setup()

    def _B_setup():
        B, S, D, F = 1, 2048, 512, 1792
        return {
            "x": _w((lambda *s: torch.randn(*s, dtype=torch.bfloat16) * 0.05)(B, S, D)),
            "w1": _w((lambda *s: torch.randn(*s, dtype=torch.bfloat16) * 0.8)(D, F) * (D ** -0.5)),
            "b1": _w((lambda *s: torch.randn(*s, dtype=torch.bfloat16) * 0.2)(F)),
            "w2": _w((lambda *s: torch.randn(*s, dtype=torch.bfloat16) * 0.2)(F, D) * (F ** -0.5)),
        }
    _B_in = _B_setup()

    return {
        "A_u": _A_in["u"],
        "A_log_A_real": _A_in["log_A_real"],
        "A_A_imag": _A_in["A_imag"],
        "A_C_real": _A_in["C_real"],
        "A_C_imag": _A_in["C_imag"],
        "A_log_dt": _A_in["log_dt"],
        "A_D_skip": _A_in["D_skip"],
        "B_x": _B_in["x"],
        "B_w1": _B_in["w1"],
        "B_b1": _B_in["b1"],
        "B_w2": _B_in["w2"],
    }

def reference(A_u, A_log_A_real, A_A_imag, A_C_real, A_C_imag, A_log_dt, A_D_skip, B_x, B_w1, B_b1, B_w2):
    def _A_ref(u, log_A_real, A_imag, C_real, C_imag, log_dt, D_skip):
        L = u.shape[1]
        dt = torch.exp(log_dt)
        A = -torch.exp(log_A_real) + 1j * A_imag
        C = (C_real + 1j * C_imag) * dt[:, None]
        pos = (lambda x, dt: x.to(dt))(torch.arange(L), log_dt.dtype)
        P = torch.exp((A * dt[:, None])[:, :, None] * pos[None, None, :])
        K = 2.0 * torch.einsum("dn,dnl->dl", C, P).real
        L2 = 2 * L
        u_t = (lambda x, *d: x.permute(*d))(u, 0, 2, 1)
        Kf = (lambda x, *a, **k: torch.fft.rfft(x.float(), *a, **k))(K, L2)
        Uf = (lambda x, *a, **k: torch.fft.rfft(x.float(), *a, **k))(u_t, L2)
        y = (lambda x, *a, **k: torch.fft.irfft(x, *a, **k).to(torch.bfloat16))(Uf * Kf[None, :, :], L2)[:, :, :L]
        y = (lambda x, *d: x.permute(*d))(y, 0, 2, 1)
        return y + u * D_skip[None, None, :]

    def _B_ref(x, w1, b1, w2):
        h = torch.einsum("bsd,df->bsf", x, w1) + b1
        sp = torch.log1p(torch.exp(-torch.abs(h))) + torch.where(h > 0, h, torch.zeros_like(h))
        act = h * torch.tanh(sp)
        return torch.einsum("bsf,fd->bsd", act, w2)

    x = A_u
    x = x + _A_ref(_layernorm(x, axis=-1), A_log_A_real, A_A_imag, A_C_real, A_C_imag, A_log_dt, A_D_skip)
    x = x + _B_ref(_layernorm(x, axis=-1), B_w1, B_b1, B_w2)
    x = x + _A_ref(_layernorm(x, axis=-1), A_log_A_real, A_A_imag, A_C_real, A_C_imag, A_log_dt, A_D_skip)
    x = x + _B_ref(_layernorm(x, axis=-1), B_w1, B_b1, B_w2)
    return x
```

```python
from emit import *
from layout import *

KC_STRIDE = 4160
KC_BASE = 0
U_BASE = 8 * KC_STRIDE
U_CH = 4608
Z_BASE = U_BASE + 2 * U_CH
Z_CH = 8192
CONV_LDS = Z_BASE + 2 * Z_CH

def shells():
    out = []
    for n in range(8):
        sh = []
        for o in range(n):
            if n + o <= 7:
                sh.append((n, o)); sh.append((o, n))
        if 2 * n <= 7:
            sh.append((n, n))
        out.append(sh)
    return out

def gen_conv(e, name, xin, xout, st):
    kbegin(e, name)
    L = f"L_{name}"
    e("s_cmp_ge_u32 s2, 256")
    e(f"s_cbranch_scc1 {L}_end")
    e("s_load_dwordx2 s[42:43], s[0:1], 104")
    e("s_load_dwordx2 s[28:29], s[0:1], 48")
    e("v_and_b32 v1, 63, v0")
    e("v_lshrrev_b32 v2, 6, v0")
    e("v_lshlrev_b32 v6, 5, v0")
    e("v_readfirstlane_b32 s3, v2")
    e("v_lshlrev_b32 v7, 4, v0")
    e("v_lshlrev_b32 v8, 4, v1")
    e("s_lshr_b32 s4, s3, 1")
    e("s_and_b32 s5, s3, 1")
    e("s_lshl_b32 s6, s2, 13")
    e(f"s_add_u32 s7, s6, {xin}")
    e(f"s_add_u32 s8, s6, {xin+4096}")
    e("s_lshl_b32 s9, s2, 1")
    e("s_add_u32 s9, s9, s4")
    e(f"s_mul_i32 s10, s9, {KB_CH}")
    e("s_lshl_b32 s11, s5, 2")
    e("s_sub_u32 s10, s10, s11")
    e(f"s_add_u32 s10, s10, {WS_KB+16}")
    e(f"s_add_u32 s11, s10, {KB_COPY}")
    e(f"s_mul_i32 s12, s3, {2*KC_STRIDE}")
    e(f"s_add_u32 s12, s12, {KC_BASE+32}")
    e("s_lshl_b32 s13, s2, 2")
    e(f"s_mov_b32 s14, {st}")
    e(f"s_mov_b32 s15, {st+8192}")
    e("s_waitcnt lgkmcnt(0)")
    e("s_load_dword s30, s[28:29], s13")
    srd(e, 44, 42, WS_SIZE)
    e("buffer_load_dwordx4 v[10:13], v6, s[44:47], s14 offen")
    e("buffer_load_dwordx4 v[14:17], v6, s[44:47], s14 offen offset:16")
    e("buffer_load_dwordx4 v[18:21], v6, s[44:47], s15 offen")
    e("buffer_load_dwordx4 v[22:25], v6, s[44:47], s15 offen offset:16")
    e("buffer_load_dwordx4 v[26:29], v7, s[44:47], s7 offen")
    e("buffer_load_dwordx4 v[30:33], v7, s[44:47], s8 offen")
    e("s_mov_b32 m0, s12")
    for j in range(4):
        e(f"buffer_load_dwordx4 v8, s[44:47], s10 offen offset:{1024*j} lds")
    e(f"s_add_u32 m0, s12, {KC_STRIDE}")
    for j in range(4):
        e(f"buffer_load_dwordx4 v8, s[44:47], s11 offen offset:{1024*j} lds")
    for i in range(4):
        e(f"v_mov_b32 v{36+i}, 0")
    e("v_lshrrev_b32 v9, 5, v1")
    e(f"v_mul_u32_u24 v9, {U_CH}, v9")
    e("v_and_b32 v34, 31, v1")
    e("v_lshl_add_u32 v9, v34, 4, v9")
    e(f"ds_write_b128 v9, v[36:39] offset:{U_BASE}")
    e("v_bfe_u32 v9, v1, 1, 3")
    e(f"v_mul_u32_u24 v9, {KC_STRIDE}, v9")
    e("v_and_b32 v34, 1, v1")
    e("v_lshl_add_u32 v9, v34, 4, v9")
    e(f"ds_write_b128 v9, v[36:39] offset:{KC_BASE}")
    e("v_lshrrev_b32 v34, 4, v1")
    e("v_and_b32 v35, 15, v1")
    e("v_bfe_u32 v2, v1, 2, 2")
    e(f"v_mul_u32_u24 v2, {KC_STRIDE}, v2")
    e("v_lshl_add_u32 v2, v34, 4, v2")
    e("v_and_b32 v9, 3, v1")
    e("v_lshl_add_u32 v2, v9, 3, v2")
    e(f"s_mul_i32 s16, s4, {4*KC_STRIDE}")
    e("s_lshl_b32 s17, s5, 8")
    e("s_add_u32 s16, s16, s17")
    e(f"s_add_u32 s16, s16, {KC_BASE+8}")
    e("v_add_u32 v2, s16, v2")
    e("v_lshlrev_b32 v3, 5, v35")
    e("v_lshlrev_b32 v9, 4, v34")
    e("v_sub_u32 v3, v3, v9")
    e(f"s_mul_i32 s16, s4, {U_CH}")
    e("s_sub_u32 s16, s16, s17")
    e(f"s_add_u32 s16, s16, {U_BASE+528-192}")
    e("v_add_u32 v3, s16, v3")
    e("v_lshl_add_u32 v4, v35, 6, v9")
    e(f"s_lshl_b32 s16, s4, 13")
    e(f"s_add_u32 s16, s16, {Z_BASE}")
    e("v_add_u32 v4, s16, v4")
    e("v_lshlrev_b32 v5, 5, v35")
    e("v_lshl_add_u32 v5, v34, 3, v5")
    e("s_lshl_b32 s18, s9, 12")
    e(f"s_add_u32 s18, s18, {xout}")
    e("s_mov_b32 s20, 0x3b000000")
    e("s_mov_b32 s21, 0x3b000000")
    e("s_mov_b32 s22, 0x3727c5ac")
    e("s_waitcnt vmcnt(10)")
    for p in range(4):
        e(f"v_pk_mul_f32 v[{10+2*p}:{11+2*p}], v[{10+2*p}:{11+2*p}], s[20:21]")
        e(f"v_pk_mul_f32 v[{18+2*p}:{19+2*p}], v[{18+2*p}:{19+2*p}], s[20:21]")
    for p in range(4):
        e(f"v_pk_fma_f32 v[{18+2*p}:{19+2*p}], v[{10+2*p}:{11+2*p}], v[{10+2*p}:{11+2*p}], v[{18+2*p}:{19+2*p}] neg_lo:[1,0,0] neg_hi:[1,0,0]")
    for r in range(8):
        e(f"v_max_f32 v{18+r}, 0, v{18+r}")
        e(f"v_add_f32 v{18+r}, s22, v{18+r}")
    for r in range(8):
        e(f"v_rsq_f32 v{18+r}, v{18+r}")
    for p in range(4):
        e(f"v_pk_mul_f32 v[{10+2*p}:{11+2*p}], v[{10+2*p}:{11+2*p}], v[{18+2*p}:{19+2*p}] neg_lo:[1,0] neg_hi:[1,0]")
    e("s_waitcnt lgkmcnt(0)")
    e("s_lshl_b32 s24, s30, 16")
    e("s_mov_b32 s25, s24")
    e("s_and_b32 s26, s30, 0xffff0000")
    e("s_mov_b32 s27, s26")
    for ch in range(2):
        e(f"s_waitcnt vmcnt({9-ch})")
        X = 40 + 16*ch
        for p in range(4):
            src = 26 + 4*ch + p
            e(f"v_lshlrev_b32 v{X+2*p}, 16, v{src}")
            e(f"v_and_b32 v{X+2*p+1}, 0xffff0000, v{src}")
        for p in range(4):
            e(f"v_pk_fma_f32 v[{X+8+2*p}:{X+9+2*p}], v[{X+2*p}:{X+1+2*p}], v[{18+2*p}:{19+2*p}], v[{10+2*p}:{11+2*p}]")
        for p in range(4):
            e(f"v_cvt_pk_bf16_f32 v{26+4*ch+p}, v{X+8+2*p}, v{X+9+2*p}")
        e(f"ds_write_b128 v7, v[{26+4*ch}:{29+4*ch}] offset:{U_BASE+512+ch*U_CH}")
        for p in range(4):
            e(f"v_pk_fma_f32 v[{X+2*p}:{X+1+2*p}], v[{X+8+2*p}:{X+9+2*p}], s[{24+2*ch}:{25+2*ch}], v[{X+2*p}:{X+1+2*p}]")
        e(f"ds_write_b128 v6, v[{X}:{X+3}] offset:{Z_BASE+ch*Z_CH}")
        e(f"ds_write_b128 v6, v[{X+4}:{X+7}] offset:{Z_BASE+ch*Z_CH+16}")
    ACC = 192
    e("s_waitcnt vmcnt(0) lgkmcnt(0)")
    e("s_barrier")
    e("s_cmp_eq_u32 s5, 0")
    e(f"s_cbranch_scc1 {L}_i0")
    for I in range(4):
        e(f"ds_read_b128 v[{ACC+4*I}:{ACC+4*I+3}], v4 offset:{1024*I}")
    for r in range(16, 32):
        e(f"v_mov_b32 v{ACC+r}, 0")
    e(f"s_branch {L}_i1")
    e.label(f"{L}_i0")
    for I in range(4, 8):
        e(f"ds_read_b128 v[{ACC+4*I}:{ACC+4*I+3}], v4 offset:{1024*I}")
    for r in range(16):
        e(f"v_mov_b32 v{ACC+r}, 0")
    e.label(f"{L}_i1")
    def A(st_, n): return 64 + 64*st_ + 4*n
    def B(st_, n): return 96 + 64*st_ + 4*n
    def loads(rr):
        st_ = rr & 1
        ops = []
        for n in range(8):
            a = A(st_, n); b = B(st_, n)
            ops.append(f"ds_read_b64_tr_b16 v[{a}:{a+1}], v2 offset:{8+512*n+64*rr}")
            ops.append(f"ds_read_b64_tr_b16 v[{a+2}:{a+3}], v2 offset:{512*n+64*rr}")
            ops.append(f"ds_read_b128 v[{b}:{b+3}], v3 offset:{512*n+64*(3-rr)}")
        return ops
    sh = shells()
    first = loads(0)
    issued = 0
    for rr in range(4):
        st_ = rr & 1
        nxt = loads(rr+1) if rr < 3 else []
        if rr == 0:
            q = list(first)
            for _ in range(12):
                e(q.pop(0))
            iss = 12
            pend = q + nxt
            total_issued = 12
            k = 0
            for n in range(8):
                need = 3*(n+1)
                while total_issued < need:
                    e(pend.pop(0)); total_issued += 1
                e(f"s_waitcnt lgkmcnt({min(15, total_issued-need)})")
                for (ta, sb) in sh[n]:
                    I = ta + sb
                    e(f"v_mfma_f32_16x16x32_bf16 v[{ACC+4*I}:{ACC+4*I+3}], v[{A(st_,ta)}:{A(st_,ta)+3}], v[{B(st_,sb)}:{B(st_,sb)+3}], v[{ACC+4*I}:{ACC+4*I+3}]")
                    if pend and total_issued - need < 14:
                        e(pend.pop(0)); total_issued += 1
            while pend:
                e(pend.pop(0))
        else:
            e("s_waitcnt lgkmcnt(0)")
            pend = list(nxt)
            k = 0
            for n in range(8):
                for (ta, sb) in sh[n]:
                    I = ta + sb
                    e(f"v_mfma_f32_16x16x32_bf16 v[{ACC+4*I}:{ACC+4*I+3}], v[{A(st_,ta)}:{A(st_,ta)+3}], v[{B(st_,sb)}:{B(st_,sb)+3}], v[{ACC+4*I}:{ACC+4*I+3}]")
                    if pend:
                        e(pend.pop(0))
    e("s_cmp_eq_u32 s5, 0")
    e(f"s_cbranch_scc1 {L}_e0")
    for hs in (1, 0):
        send = range(4) if hs == 1 else range(4, 8)
        keep = range(4, 8) if hs == 1 else range(4)
        if hs == 0:
            e.label(f"{L}_e0")
        for I in send:
            e(f"ds_write_b128 v4, v[{ACC+4*I}:{ACC+4*I+3}] offset:{1024*I}")
        e("s_waitcnt lgkmcnt(0)")
        e("s_barrier")
        for j, I in enumerate(keep):
            e(f"ds_read_b128 v[{64+4*j}:{67+4*j}], v4 offset:{1024*I}")
        for j, I in enumerate(keep):
            e(f"s_waitcnt lgkmcnt({3-j})")
            a = ACC + 4*I
            e(f"v_pk_add_f32 v[{a}:{a+1}], v[{a}:{a+1}], v[{64+4*j}:{65+4*j}]")
            e(f"v_pk_add_f32 v[{a+2}:{a+3}], v[{a+2}:{a+3}], v[{66+4*j}:{67+4*j}]")
            e(f"v_cvt_pk_bf16_f32 v{a}, v{a}, v{a+1}")
            e(f"v_cvt_pk_bf16_f32 v{a+1}, v{a+2}, v{a+3}")
            e(f"buffer_store_dwordx2 v[{a}:{a+1}], v5, s[44:47], s18 offen offset:{512*I}")
        e("s_endpgm")
    e.label(f"{L}_end")
    e("s_endpgm")
    return dict(name=name, grid=256, block=256, lds=CONV_LDS, vgpr=224)
```

```python
import re

TRANS = ("v_exp_f32", "v_log_f32", "v_rcp_f32", "v_rsq_f32", "v_sqrt_f32", "v_sin_f32", "v_cos_f32",
         "v_rcp_iflag_f32", "v_exp_f16", "v_log_f16", "v_rcp_f16", "v_rsq_f16", "v_sqrt_f16")
RMW = ("v_fmac_f32", "v_dot2c_f32_bf16", "v_dot2c_f32_f16", "v_pk_fmac_f16", "v_fmac_f16", "v_fmac_f64")

_reg_re = re.compile(r"(?<![\w.])([vas])\[(\d+):(\d+)\]|(?<![\w.])([vas])(\d+)(?![\w])|(?<![\w])(vcc|exec|m0)(?:_lo|_hi)?(?![\w])")

def regs_of(op):
    out = set()
    for m in _reg_re.finditer(op):
        if m.group(1):
            for i in range(int(m.group(2)), int(m.group(3)) + 1):
                out.add((m.group(1), i))
        elif m.group(4):
            out.add((m.group(4), int(m.group(5))))
        else:
            out.add(("x", m.group(6)))
    return out

def split_ops(s):
    ops, depth, cur = [], 0, ""
    for ch in s:
        if ch in "[(":
            depth += 1
        if ch in "])":
            depth -= 1
        if ch == "," and depth == 0:
            ops.append(cur.strip()); cur = ""
        else:
            cur += ch
    if cur.strip():
        ops.append(cur.strip())
    return ops

class Ins:
    def __init__(self, text):
        self.text = text
        t = text.split(";")[0].strip()
        parts = t.split(None, 1)
        self.op = parts[0]
        op = self.op
        if op.endswith("_e32") or op.endswith("_e64") or op.endswith("_dpp"):
            op = op[:-4]
        self.base = op
        rest = parts[1] if len(parts) > 1 else ""
        ops = split_ops(rest)
        self.mods = ""
        if ops:
            sp = ops[-1].split(None, 1)
            if len(sp) > 1 and not ops[-1].startswith("-") :
                ops[-1] = sp[0]; self.mods = sp[1]
            elif len(sp) > 1:
                ops[-1] = sp[0]; self.mods = sp[1]
        self.ops = ops
        self.w = set(); self.r = set()
        self.kind = "other"
        self.srcA = self.srcB = self.srcC = set()
        self.states = 1
        R = [regs_of(o) for o in ops]
        if op.startswith("v_mfma"):
            self.kind = "mfma"
            self.w = R[0]; self.srcA = R[1]; self.srcB = R[2]; self.srcC = R[3]
            self.r = R[1] | R[2] | R[3]
            if "32x32x16" in op or "32x32x8" in op or "16x16x4_f32" in op: self.passes = 8
            elif "16x16x32" in op or "16x16x16" in op: self.passes = 4
            elif "32x32x2_f32" in op: self.passes = 16
            else: raise ValueError("unknown mfma " + op)
            self.xdl = not op.endswith("_f32") or "bf16" in op or "f16" in op
            if op.endswith("x2_f32") or op.endswith("x4_f32"): self.xdl = False
        elif op.startswith("v_"):
            self.kind = "valu"
            nd = 1
            if op.startswith("v_add_co") or op.startswith("v_sub_co") or op.startswith("v_addc_co") or op.startswith("v_subb_co") or op.startswith("v_subrev_co") or op.startswith("v_div_scale") or op.startswith("v_mad_u64"):
                nd = 2
            if op == "v_nop":
                nd = 0
            for i in range(nd):
                self.w |= R[i]
            for i in range(nd, len(R)):
                self.r |= R[i]
            if op in RMW: self.r |= R[0]
            if op.startswith("v_permlane") and "swap" in op:
                self.w = R[0] | R[1]; self.r = R[0] | R[1]
            if op.startswith("v_cmpx"):
                self.w.add(("x", "exec"))
            if op.startswith("v_writelane"):
                self.r |= R[0]
            if op.startswith("v_cndmask") and len(ops) == 3:
                self.r.add(("x", "vcc"))
            self.trans = op in TRANS
            self.dpp = any(k in self.mods for k in ("row_", "quad_perm", "wave_", "row_bcast", "row_mirror", "row_half"))
            if self.dpp and "bound_ctrl" not in self.mods:
                self.r |= R[0]
            self.opsel_dst = False
        elif op.startswith("buffer_") or op.startswith("global_") or op.startswith("flat_"):
            self.kind = "vmem"
            is_lds = bool(re.search(r"\blds\b", self.mods)) or "load_lds" in op
            if "load" in op and not is_lds:
                self.w = R[0]
                for x in R[1:]: self.r |= x
            elif "atomic" in op and re.search(r"\bsc0\b", self.mods):
                if op.startswith("buffer_"):
                    self.w = R[0]
                    for x in R: self.r |= x
                else:
                    self.w = R[0]
                    for x in R[1:]: self.r |= x
            else:
                for x in R: self.r |= x
            if is_lds: self.r.add(("x", "m0"))
            self.is_lds = is_lds
            self.wide_store = ("store" in op) and ("x4" in op or "x3" in op)
            if self.wide_store:
                self.store_data = R[0] if op.startswith("buffer_") else R[1]
        elif op.startswith("ds_"):
            self.kind = "ds"
            if op.startswith("ds_read") or op.startswith("ds_bpermute") or op.startswith("ds_permute") or op.startswith("ds_swizzle") or "_rtn" in op:
                self.w = R[0]
                for x in R[1:]: self.r |= x
            else:
                for x in R: self.r |= x
        elif op.startswith("s_"):
            self.kind = "salu"
            if op == "s_nop":
                self.states = int(ops[0], 0) + 1
            elif op.startswith("s_cmp") or op.startswith("s_cbranch") or op in ("s_waitcnt", "s_barrier", "s_branch", "s_endpgm", "s_setprio", "s_sleep", "s_bitcmp0_b32", "s_bitcmp1_b32"):
                for x in R: self.r |= x
            else:
                if R:
                    self.w = R[0]
                    for x in R[1:]: self.r |= x
                if "saveexec" in op:
                    self.w.add(("x", "exec"))
            if op.startswith("s_load") or op.startswith("s_buffer_load") or op.startswith("s_memtime") or op.startswith("s_memrealtime"):
                self.kind = "smem"

def isv(regs):
    return {r for r in regs if r[0] in "va"}
def iss(regs):
    return {r for r in regs if r[0] == "s" or r == ("x", "vcc")}

def required(p, c):
    need = 0
    if p.kind == "valu":
        pv = isv(p.w); ps = iss(p.w)
        if c.kind == "mfma" and pv & c.r: need = max(need, 2)
        if c.kind == "valu":
            if p.trans and not c.trans and pv & (c.r | c.w): need = max(need, 1)
            if p.trans and c.trans and pv & c.r: need = max(need, 1)
            if c.base.startswith("v_readfirstlane") or c.base.startswith("v_readlane"):
                if pv & c.r: need = max(need, 1)
                if c.base.startswith("v_readlane") and ps & c.r: need = max(need, 4)
            if c.base.startswith("v_writelane") and ps & c.r: need = max(need, 4)
            if c.dpp and pv & c.r: need = max(need, 2)
            if c.base.startswith("v_permlane") and pv & c.r: need = max(need, 2)
            if ps & c.r: need = max(need, 2)
            if c.base.startswith("v_div_fmas") and ("x", "vcc") in p.w: need = max(need, 4)
            if ("x", "exec") in p.w:
                if c.dpp: need = max(need, 5)
                if c.base.startswith("v_read") or c.base.startswith("v_writelane") or c.base.startswith("v_permlane"): need = max(need, 4)
            if "op_sel" in p.mods and not p.base.startswith("v_pk_") and pv & (c.r | c.w): need = max(need, 1)
            if "dst_sel" in p.mods and pv & (c.r | c.w): need = max(need, 1)
            if p.base.startswith("v_dot") :
                if pv & (c.r | c.w):
                    same = c.base == p.base
                    if same and not (pv & (regs_of(c.ops[1]) | regs_of(c.ops[2]))):
                        pass
                    else:
                        need = max(need, 3)
        if p.base.startswith("v_dot") and c.kind in ("vmem", "ds", "mfma") and pv & c.r: need = max(need, 3)
        if c.kind == "mfma" and ("x", "exec") in p.w: need = max(need, 4)
        if c.kind == "vmem" and ps & c.r: need = max(need, 5)
        if c.kind in ("salu", "smem") and ps & c.r: need = max(need, 1)
    if p.kind == "mfma":
        n = p.passes
        tab_ab = {2: 5, 4: 8, 8: 12, 16: 20} if p.xdl else {2: 4, 4: 6, 8: 10, 16: 18}
        tab_c = {2: 4, 4: 6, 8: 10, 16: 18} if p.xdl else {2: 2, 4: 4, 8: 8, 16: 16}
        if c.kind == "mfma":
            if p.w & (c.srcA | c.srcB): need = max(need, tab_ab[n])
            if p.w & c.srcC:
                if not (p.w == c.srcC and p.passes == c.passes and p.xdl == c.xdl): need = max(need, tab_c[n])
                elif n == 2: need = max(need, 2)
            elif p.w & c.w: need = max(need, tab_c[n])
        elif c.kind in ("valu", "vmem", "ds"):
            if p.w & (c.r | c.w): need = max(need, tab_ab[n])
            if c.kind == "valu" and p.xdl and p.srcC & c.w: need = max(need, {2: 1, 4: 3, 8: 7, 16: 15}[n])
    if p.kind == "salu":
        if ("x", "m0") in p.w and ((c.kind == "vmem" and c.is_lds) or c.base.startswith("s_movrel") or "addtid" in c.base or c.base.startswith("s_sendmsg")):
            need = max(need, 1)
    if p.kind == "vmem" and getattr(p, "wide_store", False):
        if p.store_data & c.w:
            need = max(need, 2 if c.kind == "valu" else 1)
    return need

class E:
    def __init__(self):
        self.lines = []
        self.hist = []
        self.labels = {}
        self.ins = []
        self.nops = 0
        self.fwd = {}
    def raw(self, text):
        self.lines.append(text)
    def comment(self, text):
        self.lines.append("    ; " + text)
    def _push(self, ins):
        for h in self.hist:
            h[1] += ins.states
        self.hist = [h for h in self.hist if h[1] < 24]
        self.hist.append([ins, 0])
        self.ins.append(ins)
        self.lines.append("    " + ins.text)
    def _nop(self, n):
        while n > 0:
            k = min(n, 16)
            self._push(Ins(f"s_nop {k-1}"))
            self.nops += 1
            n -= k
    def __call__(self, text):
        for line in text.strip().split("\n"):
            line = line.strip()
            if not line or line.startswith(";"):
                if line: self.lines.append("    " + line)
                continue
            if line.endswith(":"):
                self.label(line[:-1]); continue
            if line.startswith("."):
                self.lines.append(line); continue
            ins = Ins(line)
            need = 0
            for p, el in self.hist:
                need = max(need, required(p, ins) - el)
            if need > 0:
                self._nop(need)
            if ins.base.startswith("s_cbranch") or ins.base == "s_branch":
                tgt = ins.ops[0]
                if tgt in self.labels:
                    idx = self.labels[tgt]
                    extra = 0
                    acc = 1
                    for c in self.ins[idx: idx + 24]:
                        for p, el in self.hist:
                            extra = max(extra, required(p, c) - el - acc)
                        acc += c.states
                        if acc > 24: break
                    if extra > 0:
                        self._nop(extra)
                else:
                    self.fwd.setdefault(tgt, []).append([[p, el + 1] for p, el in self.hist])
            self._push(ins)
    def label(self, name):
        for snap in self.fwd.pop(name, []):
            self.hist += [[p, el] for p, el in snap]
        self.labels[name] = len(self.ins)
        self.lines.append(name + ":")
    def reset_hist(self):
        self.hist = []
    def drain(self, n=20):
        self._nop(n)
    def text(self):
        return "\n".join(self.lines) + "\n"

def srd(e, d, base, nbytes):
    e(f"s_mov_b32 s{d}, s{base}")
    e(f"s_and_b32 s{d+1}, s{base+1}, 0xffff")
    e(f"s_mov_b32 s{d+2}, {nbytes}")
    e(f"s_mov_b32 s{d+3}, 0x20000")

def srd_off(e, d, base, off, nbytes):
    e(f"s_add_u32 s{d}, s{base}, {off}")
    e(f"s_addc_u32 s{d+1}, s{base+1}, 0")
    e(f"s_and_b32 s{d+1}, s{d+1}, 0xffff")
    e(f"s_mov_b32 s{d+2}, {nbytes}")
    e(f"s_mov_b32 s{d+3}, 0x20000")

def kd(name, vgpr, sgpr=96, accum=None):
    if accum is None:
        accum = (min(vgpr, 256) + 3) // 4 * 4
    return f""".p2align 6
.amdhsa_kernel {name}
  .amdhsa_next_free_vgpr {vgpr}
  .amdhsa_next_free_sgpr {sgpr}
  .amdhsa_accum_offset {accum}
  .amdhsa_group_segment_fixed_size 0
  .amdhsa_kernarg_size 112
  .amdhsa_user_sgpr_count 2
  .amdhsa_user_sgpr_kernarg_segment_ptr 1
  .amdhsa_system_sgpr_workgroup_id_x 1
.end_amdhsa_kernel
"""
def kbegin(e, name):
    e.reset_hist()
    e.raw(f".globl {name}\n.p2align 8\n.type {name},@function")
    e.label(name)
```

```python
from emit import *
from layout import *

G1_W = 0
G1_X = 114688
G1_LDS = 163840

def gen_gemm1(e, name, xin):
    kbegin(e, name)
    L = f"L_{name}"
    e("s_cmp_ge_u32 s2, 256")
    e(f"s_cbranch_scc1 {L}_end")
    e("s_load_dwordx2 s[42:43], s[0:1], 104")
    e("v_and_b32 v1, 63, v0")
    e("v_lshrrev_b32 v2, 6, v0")
    e("v_lshlrev_b32 v3, 4, v1")
    e("v_readfirstlane_b32 s3, v2")
    e("s_and_b32 s4, s2, 7")
    e("s_lshr_b32 s5, s2, 3")
    e("s_lshl_b32 s4, s4, 1")
    e("s_and_b32 s6, s5, 1")
    e("s_add_u32 s4, s4, s6")
    e("s_lshr_b32 s5, s5, 1")
    e("v_lshrrev_b32 v4, 2, v1")
    e("v_lshlrev_b32 v4, 12, v4")
    e("v_bfe_u32 v5, v1, 4, 1")
    e("v_lshlrev_b32 v5, 1, v5")
    e("v_and_b32 v6, 3, v1")
    e("v_xor_b32 v5, v5, v6")
    e("v_lshl_add_u32 v4, v5, 4, v4")
    e("s_lshl_b32 s7, s4, 8")
    e("s_lshl_b32 s8, s3, 6")
    e("s_add_u32 s7, s7, s8")
    e(f"s_add_u32 s7, s7, {xin}")
    e("s_mul_i32 s8, s3, 12288")
    e(f"s_add_u32 s8, s8, {G1_X}")
    e("s_mul_i32 s9, s5, 114688")
    e(f"s_add_u32 s9, s9, {WS_W1P}")
    e("s_lshl_b32 s10, s3, 12")
    e("s_mul_i32 s11, s3, 3072")
    e("s_add_u32 s11, s11, 16384")
    e("s_waitcnt lgkmcnt(0)")
    srd(e, 44, 42, WS_SIZE)
    ops = []
    def X(s):
        for j in range(4):
            e(f"s_add_u32 m0, s8, {(s % 3)*4096 + 1024*j}")
            e("buffer_load_dwordx4 v4, s[44:47], s7 offen lds")
            e("s_add_u32 s7, s7, 65536")
            ops.append(("X", s))
    def W(kk, part):
        off, n = ("s10", 4) if part == 0 else ("s11", 3)
        e(f"s_add_u32 m0, {off}, {G1_W + 28672*kk}")
        e(f"s_add_u32 s12, {off}, {28672*kk}")
        e("s_add_u32 s12, s12, s9")
        for j in range(n):
            e(f"buffer_load_dwordx4 v3, s[44:47], s12 offen offset:{1024*j} lds")
            ops.append(("W", 2*kk+part))
    def wait_stage(s):
        last = max(i for i, t in enumerate(ops) if t == ("X", s) or t == ("W", s))
        e(f"s_waitcnt vmcnt({len(ops)-1-last})")
    X(0); W(0, 0); X(1); W(0, 1); X(2); W(1, 0); W(1, 1)
    SB = 140
    e("v_lshrrev_b32 v5, 4, v1")
    e("v_lshlrev_b32 v6, 4, v5")
    e("s_mul_i32 s13, s5, 448")
    e(f"s_add_u32 s14, s13, {WS_S1}")
    e(f"s_add_u32 s15, s13, {WS_B1F}")
    for a in range(7):
        e(f"buffer_load_dwordx4 v[{SB+4*a}:{SB+4*a+3}], v6, s[44:47], s14 offen offset:{64*a}")
        e(f"buffer_load_dwordx4 v[{SB+28+4*a}:{SB+31+4*a}], v6, s[44:47], s15 offen offset:{64*a}")
        ops.append(("S", 0)); ops.append(("S", 0))
    e("v_lshrrev_b32 v7, 2, v1")
    e("v_lshlrev_b32 v7, 6, v7")
    e("v_and_b32 v8, 3, v1")
    e("v_lshl_add_u32 v7, v8, 3, v7")
    e("v_and_b32 v8, 1, v5")
    e("v_lshl_add_u32 v7, v8, 5, v7")
    e("v_add_u32 v7, s8, v7")
    e("v_xor_b32 v8, 32, v7")
    e("v_add_u32 v9, 0xe000, v3")
    ACC = 12
    for r in range(56):
        e(f"v_mov_b32 v{ACC+r}, 0")
    ST = 196
    for r in range(4):
        e(f"v_mov_b32 v{ST+r}, 0")
    e("s_mov_b32 s16, 0x3f803f80")
    def FA(st, a): return 68 + 36*st + 4*a
    def FB(st, j): return 68 + 36*st + 28 + 4*j
    def reads(ks):
        st = ks & 1
        s = ks >> 1
        out = []
        xo = (s % 3)*4096 + (ks & 1)*2048
        for j in range(2):
            b = FB(st, j)
            out.append(f"ds_read_b64_tr_b16 v[{b}:{b+1}], v{7+j} offset:{xo}")
            out.append(f"ds_read_b64_tr_b16 v[{b+2}:{b+3}], v{7+j} offset:{xo+1024}")
        for a in range(7):
            wo = G1_W + 7168*ks + 1024*a
            base = "v3"
            if wo >= 57344:
                wo -= 57344; base = "v9"
            out.append(f"ds_read_b128 v[{FA(st,a)}:{FA(st,a)+3}], {base} offset:{wo}")
        return out
    wait_stage(0)
    e("s_barrier")
    for r in reads(0):
        e(r)
    refill = {0: [("X", 3), ("W", 2, 0)], 1: [("X", 4), ("W", 2, 1)], 2: [("X", 5), ("W", 3, 0)], 3: [("X", 6), ("W", 3, 1)], 4: [("X", 7)]}
    for ks in range(16):
        st = ks & 1
        e("s_waitcnt lgkmcnt(0)")
        if ks & 1:
            for r in refill.get(ks >> 1, []):
                if r[0] == "X": X(r[1])
                else: W(r[1], r[2])
        nxt = reads(ks+1) if ks < 15 else []
        dots = []
        for j in range(2):
            for r in range(4):
                b = FB(st, j) + r
                dots.append(f"v_dot2_f32_bf16 v{ST+2*j}, v{b}, s16, v{ST+2*j}")
                dots.append(f"v_dot2_f32_bf16 v{ST+2*j+1}, v{b}, v{b}, v{ST+2*j+1}")
        boundary = (ks & 1) and ks < 15
        n = 0
        for a in range(7):
            for j in range(2):
                c = ACC + 4*(2*a+j)
                e(f"v_mfma_f32_16x16x32_bf16 v[{c}:{c+3}], v[{FA(st,a)}:{FA(st,a)+3}], v[{FB(st,j)}:{FB(st,j)+3}], v[{c}:{c+3}]")
                n += 1
                if boundary:
                    if n <= 6:
                        e(dots.pop(0)); e(dots.pop(0))
                    if n == 6:
                        wait_stage((ks+1) >> 1)
                        e("s_barrier")
                    if n >= 6:
                        for _ in range(2 if n < 9 else 1):
                            if nxt: e(nxt.pop(0))
                    if n > 6 and dots: e(dots.pop(0))
                else:
                    if nxt: e(nxt.pop(0))
                    if dots: e(dots.pop(0))
                    if n > 11 and dots: e(dots.pop(0))
        for r in nxt: e(r)
        for d in dots: e(d)
    T = 68
    for r in range(4):
        e(f"v_mov_b32 v{T+r}, v{ST+r}")
    for r in range(4):
        e(f"v_permlane16_swap_b32 v{T+r}, v{ST+r}")
    for r in range(4):
        e(f"v_add_f32 v{ST+r}, v{ST+r}, v{T+r}")
    for r in range(4):
        e(f"v_mov_b32 v{T+r}, v{ST+r}")
    for r in range(4):
        e(f"v_permlane32_swap_b32 v{T+r}, v{ST+r}")
    for r in range(4):
        e(f"v_add_f32 v{ST+r}, v{ST+r}, v{T+r}")
    e("s_mov_b32 s17, 0x3b000000")
    e("s_mov_b32 s18, 0x3727c5ac")
    RR = 200
    for j in range(2):
        s_, q_ = ST+2*j, ST+2*j+1
        e(f"v_mul_f32 v{s_}, s17, v{s_}")
        e(f"v_mul_f32 v{q_}, s17, v{q_}")
        e(f"v_fma_f32 v{q_}, -v{s_}, v{s_}, v{q_}")
        e(f"v_max_f32 v{q_}, 0, v{q_}")
        e(f"v_add_f32 v{q_}, s18, v{q_}")
        e(f"v_rsq_f32 v{RR+4*j}, v{q_}")
        e(f"v_mul_f32 v{RR+4*j+2}, -v{s_}, v{RR+4*j}")
    e("s_lshl_b32 s13, s4, 1")
    e("s_lshr_b32 s14, s3, 1")
    e("s_add_u32 s13, s13, s14")
    e("s_mul_i32 s13, s13, 56")
    e("s_lshr_b32 s14, s5, 1")
    e("s_mul_i32 s14, s14, 7")
    e("s_add_u32 s13, s13, s14")
    e("s_lshl_b32 s13, s13, 2")
    e("s_and_b32 s14, s3, 1")
    e("s_lshl_b32 s14, s14, 1")
    e("s_add_u32 s13, s13, s14")
    e("s_lshl_b32 s13, s13, 10")
    e(f"s_add_u32 s13, s13, {WS_ACT}")
    e("s_and_b32 s14, s5, 1")
    e("s_mul_i32 s15, s14, 12288")
    e("s_add_u32 s15, s15, s13")
    e("s_lshl_b32 s14, s14, 3")
    e("s_add_u32 s14, s14, s13")
    e("s_add_u32 s14, s14, 24576")
    e(f"s_mov_b32 s20, {L2E:#x}")
    e(f"s_mov_b32 s21, {L2E:#x}")
    e("s_mov_b32 s22, 2.0")
    e("s_mov_b32 s23, 2.0")
    e("s_mov_b32 s24, -2.0")
    e("s_mov_b32 s25, -2.0")
    e("s_waitcnt vmcnt(0)")
    def mish_group(tiles, tmp):
        prs = []
        for (a, j) in tiles:
            c = ACC + 4*(2*a+j)
            for hh in range(2):
                prs.append((c+2*hh, SB+4*a+2*hh, SB+28+4*a+2*hh, j))
        n = len(prs)
        for i, (c, s_, b_, j) in enumerate(prs):
            t = tmp + 2*i
            e(f"v_pk_fma_f32 v[{t}:{t+1}], v[{s_}:{s_+1}], v[{RR+4*j+2}:{RR+4*j+3}], v[{b_}:{b_+1}] op_sel_hi:[1,0,1]")
        for i, (c, s_, b_, j) in enumerate(prs):
            t = tmp + 2*i
            e(f"v_pk_fma_f32 v[{c}:{c+1}], v[{c}:{c+1}], v[{RR+4*j}:{RR+4*j+1}], v[{t}:{t+1}] op_sel_hi:[1,0,1]")
        for i, (c, s_, b_, j) in enumerate(prs):
            t = tmp + 2*i
            e(f"v_pk_mul_f32 v[{t}:{t+1}], v[{c}:{c+1}], s[20:21]")
        for i in range(2*n):
            e(f"v_exp_f32 v{tmp+i}, v{tmp+i}")
        for i, (c, s_, b_, j) in enumerate(prs):
            t = tmp + 2*i; u = tmp + 2*n + 2*i
            e(f"v_pk_add_f32 v[{u}:{u+1}], v[{t}:{t+1}], s[22:23]")
        for i, (c, s_, b_, j) in enumerate(prs):
            t = tmp + 2*i; u = tmp + 2*n + 2*i
            e(f"v_pk_fma_f32 v[{t}:{t+1}], v[{t}:{t+1}], v[{u}:{u+1}], s[22:23]")
        for i in range(2*n):
            e(f"v_rcp_f32 v{tmp+i}, v{tmp+i}")
        for i, (c, s_, b_, j) in enumerate(prs):
            t = tmp + 2*i
            e(f"v_pk_fma_f32 v[{t}:{t+1}], v[{t}:{t+1}], s[24:25], 1.0 op_sel_hi:[1,1,0]")
        for i, (c, s_, b_, j) in enumerate(prs):
            t = tmp + 2*i
            e(f"v_pk_mul_f32 v[{t}:{t+1}], v[{t}:{t+1}], v[{c}:{c+1}]")
        return prs
    g = 0
    for m in range(3):
        for j in range(2):
            tmp = 68 + 24*(g % 3); g += 1
            mish_group([(2*m, j), (2*m+1, j)], tmp)
            o = tmp + 16
            for i in range(4):
                e(f"v_cvt_pk_bf16_f32 v{o+i}, v{tmp+2*i}, v{tmp+2*i+1}")
            e(f"buffer_store_dwordx4 v[{o}:{o+3}], v3, s[44:47], s15 offen offset:{1024*j}")
        if m < 2: e("s_add_u32 s15, s15, 4096")
    tmp = 68 + 24*(g % 3)
    mish_group([(6, 0), (6, 1)], tmp)
    o = tmp + 16
    for i in range(4):
        e(f"v_cvt_pk_bf16_f32 v{o+i}, v{tmp+2*i}, v{tmp+2*i+1}")
    e(f"buffer_store_dwordx2 v[{o}:{o+1}], v3, s[44:47], s14 offen")
    e(f"buffer_store_dwordx2 v[{o+2}:{o+3}], v3, s[44:47], s14 offen offset:1024")
    e.label(f"{L}_end")
    e("s_endpgm")
    return dict(name=name, grid=256, block=256, lds=G1_LDS, vgpr=208)
```

```python
from emit import *
from layout import *

G2_RS = 272
G2_PART = 64 * G2_RS
G2_LDS = 4 * G2_PART

def gen_gemm2(e, name, xres, xout, final, depth=7):
    kbegin(e, name)
    L = f"L_{name}"
    e("s_cmp_ge_u32 s2, 256")
    e(f"s_cbranch_scc1 {L}_end")
    e("s_load_dwordx2 s[42:43], s[0:1], 104")
    if final:
        e("s_load_dwordx2 s[38:39], s[0:1], 88")
    e("v_and_b32 v1, 63, v0")
    e("v_lshrrev_b32 v2, 6, v0")
    e("v_lshlrev_b32 v3, 4, v1")
    e("v_readfirstlane_b32 s3, v2")
    e("s_and_b32 s4, s2, 7")
    e("s_lshr_b32 s5, s2, 3")
    e("s_lshl_b32 s4, s4, 2")
    e("s_and_b32 s6, s5, 3")
    e("s_add_u32 s4, s4, s6")
    e("s_lshr_b32 s5, s5, 2")
    e("s_mul_i32 s6, s3, 57344")
    e("s_mul_i32 s7, s4, 229376")
    e("s_add_u32 s7, s7, s6")
    e(f"s_add_u32 s7, s7, {WS_ACT}")
    e("s_mul_i32 s8, s5, 229376")
    e("s_add_u32 s8, s8, s6")
    e(f"s_add_u32 s8, s8, {WS_W2P}")
    e("s_waitcnt lgkmcnt(0)")
    srd(e, 44, 42, WS_SIZE)
    ACC = 8
    FR = 72
    def FA(ks, t): return FR + 32*(ks % depth) + 4*t
    def FB(ks, t): return FR + 32*(ks % depth) + 16 + 4*t
    def issue(ks):
        for t in range(4):
            e(f"buffer_load_dwordx4 v[{FA(ks,t)}:{FA(ks,t)+3}], v3, s[44:47], s7 offen offset:{1024*t}")
            e(f"buffer_load_dwordx4 v[{FB(ks,t)}:{FB(ks,t)+3}], v3, s[44:47], s8 offen offset:{1024*t}")
        e("s_add_u32 s7, s7, 4096")
        e("s_add_u32 s8, s8, 4096")
    for ks in range(depth):
        issue(ks)
    e("v_and_b32 v4, 15, v1")
    e("v_lshrrev_b32 v5, 4, v0")
    e("v_lshlrev_b32 v6, 14, v4")
    e("v_lshl_add_u32 v6, v5, 3, v6")
    e("s_lshl_b32 s9, s5, 18")
    e("s_lshl_b32 s10, s4, 7")
    e("s_add_u32 s9, s9, s10")
    e(f"s_add_u32 s10, s9, {xres}")
    for r in range(64):
        e(f"v_mov_b32 v{ACC+r}, 0")
    for ks in range(14):
        rem = min(depth, 14-ks) - 1
        e(f"s_waitcnt vmcnt({8*rem})")
        for lt in range(4):
            for dt in range(4):
                c = ACC + 4*(4*lt+dt)
                e(f"v_mfma_f32_16x16x32_bf16 v[{c}:{c+3}], v[{FA(ks,lt)}:{FA(ks,lt)+3}], v[{FB(ks,dt)}:{FB(ks,dt)+3}], v[{c}:{c+3}]")
        if ks + depth < 14:
            issue(ks + depth)
    RES = 72
    for dd in range(4):
        e(f"s_add_u32 s11, s10, {4096*dd}")
        e(f"buffer_load_dwordx2 v[{RES+2*dd}:{RES+2*dd+1}], v6, s[44:47], s11 offen")
    e("v_lshrrev_b32 v7, 4, v1")
    e(f"v_mul_u32_u24 v2, {G2_RS}, v4")
    e("v_lshl_add_u32 v2, v7, 4, v2")
    e(f"s_mul_i32 s11, s3, {G2_PART}")
    e("v_add_u32 v2, s11, v2")
    for lt in range(4):
        for dt in range(4):
            c = ACC + 4*(4*lt+dt)
            e(f"ds_write_b128 v2, v[{c}:{c+3}] offset:{16*dt*G2_RS + 64*lt}")
    e(f"v_mul_u32_u24 v2, {4*G2_RS}, v4")
    e("v_lshl_add_u32 v2, v5, 4, v2")
    e("s_waitcnt lgkmcnt(0)")
    e("s_barrier")
    P = 80
    for w in range(4):
        for dd in range(4):
            r = P + 16*w + 4*dd
            e(f"ds_read_b128 v[{r}:{r+3}], v2 offset:{w*G2_PART + dd*G2_RS}")
    X = 8
    e("s_waitcnt vmcnt(0)")
    for dd in range(4):
        for h in range(2):
            e(f"v_lshlrev_b32 v{X+4*dd+2*h}, 16, v{RES+2*dd+h}")
            e(f"v_and_b32 v{X+4*dd+2*h+1}, 0xffff0000, v{RES+2*dd+h}")
    for w in range(4):
        e(f"s_waitcnt lgkmcnt({12-4*w})")
        for k in range(8):
            e(f"v_pk_add_f32 v[{X+2*k}:{X+2*k+1}], v[{X+2*k}:{X+2*k+1}], v[{P+16*w+2*k}:{P+16*w+2*k+1}]")
    O = 24
    if not final:
        e(f"s_add_u32 s10, s9, {xout}")
        for dd in range(4):
            e(f"v_cvt_pk_bf16_f32 v{O+2*dd}, v{X+4*dd}, v{X+4*dd+1}")
            e(f"v_cvt_pk_bf16_f32 v{O+2*dd+1}, v{X+4*dd+2}, v{X+4*dd+3}")
            e(f"s_add_u32 s11, s10, {4096*dd}")
            e(f"buffer_store_dwordx2 v[{O+2*dd}:{O+2*dd+1}], v6, s[44:47], s11 offen")
        Y = 32
        for dd in range(4):
            for h in range(2):
                e(f"v_lshlrev_b32 v{Y+4*dd+2*h}, 16, v{O+2*dd+h}")
                e(f"v_and_b32 v{Y+4*dd+2*h+1}, 0xffff0000, v{O+2*dd+h}")
        S = 48
        for h in range(2):
            e(f"v_pk_add_f32 v[{S+2*h}:{S+2*h+1}], v[{Y+2*h}:{Y+2*h+1}], v[{Y+4+2*h}:{Y+5+2*h}]")
            e(f"v_pk_mul_f32 v[{S+4+2*h}:{S+5+2*h}], v[{Y+2*h}:{Y+2*h+1}], v[{Y+2*h}:{Y+2*h+1}]")
        for dd in range(2, 4):
            for h in range(2):
                e(f"v_pk_add_f32 v[{S+2*h}:{S+2*h+1}], v[{S+2*h}:{S+2*h+1}], v[{Y+4*dd+2*h}:{Y+4*dd+2*h+1}]")
        for dd in range(1, 4):
            for h in range(2):
                y = Y+4*dd+2*h
                e(f"v_pk_fma_f32 v[{S+4+2*h}:{S+5+2*h}], v[{y}:{y+1}], v[{y}:{y+1}], v[{S+4+2*h}:{S+5+2*h}]")
        for m in ("quad_perm:[1,0,3,2]", "quad_perm:[2,3,0,1]", "row_half_mirror", "row_mirror"):
            for r in range(8):
                e(f"v_add_f32_dpp v{S+r}, v{S+r}, v{S+r} {m} row_mask:0xf bank_mask:0xf")
        for bit, step in ((0, 1), (1, 2), (2, 4)):
            e(f"v_and_b32 v7, {1<<bit}, v4")
            e("v_cmp_ne_u32 vcc, 0, v7")
            for r in range(0, 8, 2*step):
                e(f"v_cndmask_b32 v{S+r}, v{S+r}, v{S+r+step}, vcc")
        e("v_and_b32 v7, 3, v4")
        e("v_lshl_add_u32 v7, v5, 2, v7")
        e("v_lshlrev_b32 v7, 2, v7")
        e("v_bfe_u32 v2, v4, 2, 1")
        e("v_lshl_add_u32 v7, v2, 13, v7")
        e("s_lshl_b32 s11, s4, 8")
        e(f"s_add_u32 s11, s11, {WS_ST2}")
        e("v_cmp_gt_u32 vcc, 8, v4")
        e("s_and_b64 exec, exec, vcc")
        e(f"buffer_atomic_add_f32 v{S}, v7, s[44:47], s11 offen")
    else:
        srd(e, 48, 38, 2048*512*2)
        e("v_lshlrev_b32 v7, 12, v5")
        e("v_lshl_add_u32 v7, v4, 3, v7")
        e("s_lshl_b32 s10, s4, 16")
        e("s_lshl_b32 s11, s5, 7")
        e("s_add_u32 s10, s10, s11")
        for li in range(4):
            e(f"v_cvt_pk_bf16_f32 v{O+2*li}, v{X+li}, v{X+4+li}")
            e(f"v_cvt_pk_bf16_f32 v{O+2*li+1}, v{X+8+li}, v{X+12+li}")
            e(f"buffer_store_dwordx2 v[{O+2*li}:{O+2*li+1}], v7, s[48:51], s10 offen offset:{1024*li}")
    e.label(f"{L}_end")
    e("s_endpgm")
    nv = FR + 32*depth
    return dict(name=name, grid=256, block=256, lds=G2_LDS, vgpr=nv, accum=min(256, nv))
```

```python
WS_XT = [0x000000, 0x200000, 0x400000, 0x600000]
WS_ST0 = 0x800000
WS_ST2 = 0x804000
WS_S1 = 0x808000
WS_B1F = 0x80A000
WS_KB = 0x900000
KB_COPY = 4112
KB_CH = 2 * KB_COPY
WS_W1P = 0x1000000
WS_W2P = 0x1200000
WS_ACT = 0x1400000
WS_SIZE = 0x2000000
L2E = 0x3fb8aa3b
L2E_LO = 0x32a57060
LN2 = 0x3f317218
```

```python
from emit import *
from layout import *

NT = 64
NS = 28
NP1 = 64
NP2 = 56
NK = 512
NPRE = NT + NS + NP1 + NP2
PREP_WGS = NPRE + NK
PREP_LDS = 32 * 1056

def load_args(e):
    e("s_load_dwordx16 s[16:31], s[0:1], 0")
    e("s_load_dwordx8 s[32:39], s[0:1], 64")
    e("s_load_dwordx4 s[40:43], s[0:1], 96")

def exp_acc(e, dst, x, t0, t1, sL2E, sL2Elo, sLN2):
    e(f"v_mul_f32 v{t0}, s{sL2E}, v{x}")
    e(f"v_fma_f32 v{t1}, v{x}, s{sL2E}, -v{t0}")
    e(f"v_fma_f32 v{t1}, v{x}, s{sL2Elo}, v{t1}")
    e(f"v_exp_f32 v{dst}, v{t0}")
    e(f"v_mul_f32 v{t1}, s{sLN2}, v{t1}")
    e(f"v_fma_f32 v{dst}, v{dst}, v{t1}, v{dst}")

def gen_prep(e, name="prep_kernel"):
    kbegin(e, name)
    e(f"s_cmp_ge_u32 s2, {PREP_WGS}")
    e(f"s_cbranch_scc1 L_prep_end")
    load_args(e)
    e("v_and_b32 v1, 63, v0")
    e("v_lshrrev_b32 v2, 6, v0")
    e("s_nop 0")
    e("v_readfirstlane_b32 s3, v2")
    e("s_waitcnt lgkmcnt(0)")
    srd(e, 44, 42, WS_SIZE)
    e(f"s_cmp_ge_u32 s2, {NPRE}")
    e("s_cbranch_scc1 L_prep_k")
    e(f"s_cmp_ge_u32 s2, {NT+NS+NP1}")
    e("s_cbranch_scc1 L_prep_p2")
    e(f"s_cmp_ge_u32 s2, {NT+NS}")
    e("s_cbranch_scc1 L_prep_p1")
    e(f"s_cmp_ge_u32 s2, {NT}")
    e("s_cbranch_scc1 L_prep_s")
    srd(e, 48, 16, 2048*512*2)
    e("s_lshl_b32 s4, s2, 15")
    e("v_lshrrev_b32 v3, 3, v0")
    e("v_and_b32 v4, 7, v0")
    e("v_lshlrev_b32 v5, 10, v3")
    e("v_lshl_add_u32 v5, v4, 4, v5")
    for j in range(8):
        e(f"buffer_load_dwordx4 v[{8+4*j}:{11+4*j}], v5, s[48:51], s4 offen offset:{128*j}")
    e("v_mul_u32_u24 v6, 1056, v3")
    e("v_lshl_add_u32 v6, v4, 4, v6")
    e("s_mov_b32 s5, 0x3f803f80")
    e("v_mov_b32 v40, 0")
    e("v_mov_b32 v41, 0")
    for j in range(8):
        e(f"s_waitcnt vmcnt({7-j})")
        e(f"ds_write_b128 v6, v[{8+4*j}:{11+4*j}] offset:{128*j}")
        for k in range(4):
            e(f"v_dot2_f32_bf16 v40, v{8+4*j+k}, s5, v40")
            e(f"v_dot2_f32_bf16 v41, v{8+4*j+k}, v{8+4*j+k}, v41")
    for m in ("quad_perm:[1,0,3,2]", "quad_perm:[2,3,0,1]", "row_half_mirror"):
        e(f"v_add_f32_dpp v40, v40, v40 {m} row_mask:0xf bank_mask:0xf")
        e(f"v_add_f32_dpp v41, v41, v41 {m} row_mask:0xf bank_mask:0xf")
    e("s_lshl_b32 s6, s2, 7")
    e("v_lshlrev_b32 v7, 2, v3")
    e("v_mov_b32 v42, 0")
    e(f"s_add_u32 s7, s6, {WS_ST0}")
    e(f"s_add_u32 s8, s6, {WS_ST0+8192}")
    e(f"s_add_u32 s12, s6, {WS_ST2}")
    e(f"s_add_u32 s13, s6, {WS_ST2+8192}")
    e("v_cmp_eq_u32 vcc, 0, v4")
    e("s_and_saveexec_b64 s[10:11], vcc")
    e("buffer_store_dword v40, v7, s[44:47], s7 offen")
    e("buffer_store_dword v41, v7, s[44:47], s8 offen")
    e("buffer_store_dword v42, v7, s[44:47], s12 offen")
    e("buffer_store_dword v42, v7, s[44:47], s13 offen")
    e("s_mov_b64 exec, s[10:11]")
    e("v_lshrrev_b32 v3, 4, v1")
    e("v_bfe_u32 v4, v1, 2, 2")
    e("v_lshl_add_u32 v4, v3, 3, v4")
    e("v_mul_u32_u24 v4, 1056, v4")
    e("v_and_b32 v5, 3, v1")
    e("v_lshl_add_u32 v4, v5, 3, v4")
    e("s_lshl_b32 s9, s3, 8")
    e("v_add_u32 v4, s9, v4")
    e("v_and_b32 v5, 15, v1")
    e("v_lshlrev_b32 v5, 12, v5")
    e("v_lshl_add_u32 v5, v3, 4, v5")
    e("s_lshl_b32 s9, s3, 19")
    e("s_lshl_b32 s10, s2, 6")
    e("s_add_u32 s9, s9, s10")
    e(f"s_add_u32 s9, s9, {WS_XT[0]}")
    e("s_waitcnt lgkmcnt(0)")
    e("s_barrier")
    for it in range(8):
        e(f"ds_read_b64_tr_b16 v[{8+4*it}:{9+4*it}], v4 offset:{32*it}")
        e(f"ds_read_b64_tr_b16 v[{10+4*it}:{11+4*it}], v4 offset:{32*it+4*1056}")
    for it in range(8):
        e(f"s_waitcnt lgkmcnt({14-2*it})")
        e(f"buffer_store_dwordx4 v[{8+4*it}:{11+4*it}], v5, s[44:47], s9 offen")
        e(f"s_add_u32 s9, s9, 65536")
    e("s_endpgm")
    e.label("L_prep_s")
    srd(e, 48, 32, 512*1792*2)
    srd(e, 52, 34, 1792*2)
    e(f"s_sub_u32 s4, s2, {NT}")
    e("s_lshl_b32 s5, s4, 7")
    e("v_lshrrev_b32 v3, 3, v0")
    e("v_and_b32 v4, 7, v0")
    e(f"v_mul_u32_u24 v5, {16*3584}, v3")
    e("v_lshl_add_u32 v5, v4, 4, v5")
    for k in range(16):
        e(f"buffer_load_dwordx4 v[{8+4*k}:{11+4*k}], v5, s[48:51], s5 offen")
        if k < 15: e(f"s_add_u32 s5, s5, 3584")
    e("v_lshlrev_b32 v6, 1, v0")
    e("s_lshl_b32 s5, s4, 7")
    e("buffer_load_ushort v80, v6, s[52:55], s5 offen")
    for i in range(8):
        e(f"v_mov_b32 v{72+i}, 0")
    for k in range(16):
        e(f"s_waitcnt vmcnt({16-k})")
        for q in range(4):
            r = 8+4*k+q
            e(f"v_lshlrev_b32 v82, 16, v{r}")
            e(f"v_and_b32 v83, 0xffff0000, v{r}")
            e(f"v_pk_add_f32 v[{72+2*q}:{73+2*q}], v[{72+2*q}:{73+2*q}], v[82:83]")
    e("v_lshlrev_b32 v5, 8, v3")
    e("v_lshl_add_u32 v5, v4, 5, v5")
    e("ds_write_b128 v5, v[72:75]")
    e("ds_write_b128 v5, v[76:79] offset:16")
    e("s_waitcnt lgkmcnt(0)")
    e("s_barrier")
    e("s_cmp_lg_u32 s3, 0")
    e("s_cbranch_scc1 L_prep_end")
    e("v_lshlrev_b32 v5, 2, v0")
    for g in range(32):
        e(f"ds_read_b32 v{8+g}, v5 offset:{256*g}")
    e("s_waitcnt lgkmcnt(0)")
    for g in range(1, 32):
        e(f"v_add_f32 v8, v8, v{8+g}")
    e("s_lshl_b32 s5, s4, 8")
    e(f"s_add_u32 s6, s5, {WS_S1}")
    e(f"s_add_u32 s7, s5, {WS_B1F}")
    e("s_waitcnt vmcnt(0)")
    e("v_lshlrev_b32 v80, 16, v80")
    e("buffer_store_dword v8, v5, s[44:47], s6 offen")
    e("buffer_store_dword v80, v5, s[44:47], s7 offen")
    e("s_endpgm")
    e.label("L_prep_p1")
    srd(e, 48, 32, 512*1792*2)
    e(f"s_sub_u32 s4, s2, {NT+NS}")
    e("s_lshr_b32 s5, s4, 2")
    e("s_and_b32 s6, s4, 3")
    e("s_lshl_b32 s7, s5, 5")
    e("s_lshl_b32 s8, s3, 3")
    e("s_add_u32 s7, s7, s8")
    e("s_mul_i32 s7, s7, 3584")
    e("s_mul_i32 s9, s6, 896")
    e("s_add_u32 s7, s7, s9")
    e("s_mul_i32 s9, s8, 928")
    e("v_lshlrev_b32 v3, 4, v1")
    e("s_mov_b64 s[10:11], exec")
    e("s_mov_b32 exec_hi, 0x00ffffff")
    for r in range(8):
        e(f"s_add_u32 m0, s9, {928*r}")
        e("buffer_load_dwordx4 v3, s[48:51], s7 offen lds")
        if r < 7: e("s_add_u32 s7, s7, 3584")
    e("s_mov_b64 exec, s[10:11]")
    e("v_lshrrev_b32 v4, 2, v1")
    e("v_mul_u32_u24 v4, 928, v4")
    e("v_and_b32 v5, 3, v1")
    e("v_lshl_add_u32 v4, v5, 3, v4")
    e("s_mul_i32 s9, s3, 224")
    e("v_add_u32 v4, s9, v4")
    e("s_lshl_b32 s9, s6, 2")
    e("s_add_u32 s9, s9, s3")
    e("s_lshl_b32 s9, s9, 4")
    e("s_add_u32 s9, s9, s5")
    e("s_mul_i32 s9, s9, 7168")
    e(f"s_add_u32 s9, s9, {WS_W1P}")
    e("s_add_u32 s12, s9, 4096")
    e("s_waitcnt vmcnt(0)")
    e("s_barrier")
    for a in range(7):
        e(f"ds_read_b64_tr_b16 v[{8+4*a}:{9+4*a}], v4 offset:{32*a}")
        e(f"ds_read_b64_tr_b16 v[{10+4*a}:{11+4*a}], v4 offset:{32*a+16*928}")
    for a in range(7):
        e(f"s_waitcnt lgkmcnt({12-2*a})")
        e(f"buffer_store_dwordx4 v[{8+4*a}:{11+4*a}], v3, s[44:47], s{9 if a < 4 else 12} offen offset:{1024*(a&3)}")
    e("s_endpgm")
    e.label("L_prep_p2")
    srd(e, 48, 36, 512*1792*2)
    e(f"s_sub_u32 s4, s2, {NT+NS+NP1}")
    e("s_mul_i32 s5, s4, 9363")
    e("s_lshr_b32 s5, s5, 16")
    e("s_mul_i32 s6, s5, 7")
    e("s_sub_u32 s6, s4, s6")
    e("s_mul_i32 s7, s5, 224")
    e("s_lshl_b32 s8, s6, 5")
    e("s_cmp_ge_u32 s6, 3")
    e("s_cselect_b32 s10, 16, 0")
    e("s_add_u32 s8, s8, s10")
    e("s_add_u32 s9, s8, 16")
    e("s_cmp_eq_u32 s6, 6")
    e("s_cselect_b32 s8, 96, s8")
    e("s_cselect_b32 s9, 208, s9")
    e("s_cmp_ge_u32 s3, 2")
    e("s_cselect_b32 s8, s9, s8")
    e("s_and_b32 s10, s3, 1")
    e("s_lshl_b32 s10, s10, 3")
    e("s_add_u32 s8, s8, s10")
    e("s_add_u32 s8, s8, s7")
    e("s_lshl_b32 s8, s8, 10")
    e("s_mul_i32 s9, s3, 8*1056")
    e("v_lshlrev_b32 v3, 4, v1")
    for r in range(8):
        e(f"s_add_u32 m0, s9, {1056*r}")
        e("buffer_load_dwordx4 v3, s[48:51], s8 offen lds")
        if r < 7: e("s_add_u32 s8, s8, 1024")
    e("v_lshrrev_b32 v4, 2, v1")
    e("v_mul_u32_u24 v4, 1056, v4")
    e("v_and_b32 v5, 3, v1")
    e("v_lshl_add_u32 v4, v5, 3, v4")
    e("s_lshl_b32 s9, s3, 8")
    e("v_add_u32 v4, s9, v4")
    e("s_mul_i32 s9, s3, 112")
    e("s_add_u32 s9, s9, s4")
    e("s_lshl_b32 s9, s9, 12")
    e(f"s_add_u32 s9, s9, {WS_W2P}")
    e(f"s_add_u32 s12, s9, {56*4096}")
    e("s_waitcnt vmcnt(0)")
    e("s_barrier")
    for a in range(8):
        e(f"ds_read_b64_tr_b16 v[{8+4*a}:{9+4*a}], v4 offset:{32*a}")
        e(f"ds_read_b64_tr_b16 v[{10+4*a}:{11+4*a}], v4 offset:{32*a+16*1056}")
    for a in range(8):
        e(f"s_waitcnt lgkmcnt({14-2*a})")
        e(f"buffer_store_dwordx4 v[{8+4*a}:{11+4*a}], v3, s[44:47], s{9 if a < 4 else 12} offen offset:{1024*(a&3)}")
    e("s_endpgm")
    e.label("L_prep_k")
    srd(e, 48, 18, 512*128*2)
    srd(e, 52, 20, 512*128*2)
    srd(e, 56, 22, 512*128*2)
    srd(e, 60, 24, 512*128*2)
    srd(e, 64, 26, 512*2)
    e(f"s_sub_u32 s4, s2, {NPRE}")
    e("s_lshl_b32 s5, s4, 8")
    e("s_lshl_b32 s6, s4, 1")
    e("v_lshlrev_b32 v3, 2, v1")
    e("v_and_b32 v4, 31, v1")
    e("v_lshrrev_b32 v5, 5, v1")
    e("s_lshl_b32 s7, s3, 6")
    e("v_lshl_add_u32 v6, v4, 1, s7")
    e("v_mov_b32 v7, 0")
    e("buffer_load_dword v8, v3, s[56:59], s5 offen")
    e("buffer_load_dword v9, v3, s[60:63], s5 offen")
    e("buffer_load_ushort v10, v6, s[48:51], s5 offen")
    e("buffer_load_ushort v11, v6, s[52:55], s5 offen")
    e("buffer_load_ushort v12, v6, s[56:59], s5 offen")
    e("buffer_load_ushort v13, v6, s[60:63], s5 offen")
    e("buffer_load_ushort v14, v7, s[64:67], s6 offen")
    e(f"s_mov_b32 s8, {L2E:#x}")
    e(f"s_mov_b32 s9, {L2E_LO:#x}")
    e(f"s_mov_b32 s10, {LN2:#x}")
    e("v_mov_b32 v16, v4")
    e("v_lshl_add_u32 v18, v4, 1, 0")
    e("v_add_u32 v18, 240, v18")
    e("v_cmp_lt_u32 vcc, 7, v4")
    e("v_cndmask_b32 v16, v16, v18, vcc")
    e("v_bfe_u32 v18, v4, 1, 1")
    e("v_lshlrev_b32 v18, 8, v18")
    e("v_and_b32 v19, 1, v4")
    e("v_lshl_add_u32 v18, v19, 2, v18")
    e("v_add_u32 v18, 512, v18")
    e("v_cmp_lt_u32 vcc, 11, v4")
    e("v_cndmask_b32 v16, v16, v18, vcc")
    e("v_lshlrev_b32 v18, 8, v4")
    e("v_subrev_u32 v18, 3072, v18")
    e("v_cmp_lt_u32 vcc, 15, v4")
    e("v_cndmask_b32 v16, v16, v18, vcc")
    e("v_cmp_lt_u32 vcc, 20, v4")
    e("v_cndmask_b32 v16, v16, v7, vcc")
    e("v_cvt_f32_u32 v16, v16")
    e("v_lshlrev_b32 v17, 3, v4")
    e("v_cvt_f32_u32 v17, v17")
    e("s_waitcnt vmcnt(5)")
    e("v_and_b32 v8, 0x7fff7fff, v8")
    e("v_and_b32 v9, 0x7fff7fff, v9")
    e("v_pk_max_u16 v8, v8, v9")
    e("v_and_b32 v9, 0xffff, v8")
    e("v_lshrrev_b32 v8, 16, v8")
    e("v_max_u32 v8, v8, v9")
    for m in ("row_shr:1", "row_shr:2", "row_shr:4", "row_shr:8"):
        e(f"v_max_u32_dpp v8, v8, v8 {m} row_mask:0xf bank_mask:0xf")
    e("v_max_u32_dpp v8, v8, v8 row_bcast:15 row_mask:0xa bank_mask:0xf")
    e("v_max_u32_dpp v8, v8, v8 row_bcast:31 row_mask:0xc bank_mask:0xf")
    e("v_readlane_b32 s11, v8, 63")
    e("s_lshr_b32 s11, s11, 7")
    e("s_max_u32 s11, s11, 1")
    e("s_min_u32 s11, s11, 253")
    e("s_sub_u32 s12, 254, s11")
    e("s_lshl_b32 s12, s12, 23")
    e("s_add_u32 s11, s11, 1")
    e("s_lshl_b32 s11, s11, 23")
    e("s_waitcnt vmcnt(0)")
    for r in (10, 11, 12, 13, 14):
        e(f"v_lshlrev_b32 v{r}, 16, v{r}")
    exp_acc(e, 20, 10, 18, 19, 8, 9, 10)
    exp_acc(e, 21, 14, 18, 19, 8, 9, 10)
    e("v_cvt_pk_bf16_f32 v20, v20, v21")
    e("v_and_b32 v21, 0xffff0000, v20")
    e("v_lshlrev_b32 v20, 16, v20")
    e("v_mul_f32 v24, v20, v21")
    e("v_mul_f32 v24, s8, v24")
    e("v_sub_f32 v24, 0, v24")
    e("v_mul_f32 v25, v11, v21")
    e("v_mul_f32 v25, 0.15915494, v25")
    e("v_mul_f32 v26, s12, v12")
    e("v_mul_f32 v27, s12, v13")
    e("v_mul_f32 v15, s11, v21")
    e("s_lshl_b32 s13, s3, 9")
    e("v_lshl_add_u32 v18, v4, 4, s13")
    e("ds_write_b128 v18, v[24:27]")
    e("v_lshl_add_u32 v18, v5, 6, s13")
    for i in range(16):
        e(f"v_mov_b32 v{100+i}, 0")
    e("s_mov_b32 s14, 0")
    e("s_waitcnt lgkmcnt(0)")
    e.label("L_prep_kloop")
    P = [28, 32, 36, 40]
    for m in range(4):
        e(f"ds_read_b128 v[{P[m]}:{P[m]+3}], v18 offset:{16*m}")
    e("v_add_u32 v18, 128, v18")
    def T(m, xy): return 44 + 6*(2*m+xy)
    e("s_waitcnt lgkmcnt(0)")
    for m in range(4):
        for xy in range(2):
            t = T(m, xy)
            e(f"v_pk_mul_f32 v[{t}:{t+1}], v[{P[m]}:{P[m]+1}], v[16:17] op_sel:[0,{xy}] op_sel_hi:[1,{xy}]")
    for m in range(4):
        for xy in range(2):
            t = T(m, xy)
            e(f"v_fract_f32 v{t+1}, v{t+1}")
            e(f"v_exp_f32 v{t+4}, v{t}")
    for m in range(4):
        for xy in range(2):
            t = T(m, xy)
            e(f"v_cos_f32 v{t+2}, v{t+1}")
            e(f"v_sin_f32 v{t+3}, v{t+1}")
    for m in range(4):
        t = T(m, 0)
        e(f"v_pk_mul_f32 v[{t}:{t+1}], v[{t+2}:{t+3}], v[{P[m]+2}:{P[m]+3}] op_sel:[0,0] op_sel_hi:[1,0] neg_hi:[0,1]")
        e(f"v_pk_fma_f32 v[{t+2}:{t+3}], v[{t+2}:{t+3}], v[{P[m]+2}:{P[m]+3}], v[{t}:{t+1}] op_sel:[1,1,0] op_sel_hi:[0,1,1] neg_lo:[0,1,0] neg_hi:[0,1,0]")
    for m in range(4):
        for xy in range(2):
            t = T(m, xy)
            e(f"v_pk_mul_f32 v[{t+2}:{t+3}], v[{t+2}:{t+3}], v[{t+4}:{t+5}] op_sel:[0,0] op_sel_hi:[1,0]")
    for m in range(4):
        for xy in range(2):
            t = T(m, xy)
            e(f"v_cvt_pk_f16_f32 v{92+4*xy+m}, v{t+2}, v{t+3}")
    e("v_mfma_f32_32x32x16_f16 v[100:115], v[92:95], v[96:99], v[100:115]")
    e("s_add_u32 s14, s14, 1")
    e("s_cmp_lt_u32 s14, 4")
    e("s_cbranch_scc1 L_prep_kloop")
    e("s_mul_i32 s13, s3, 3072")
    e("s_add_u32 s13, s13, 2048")
    e("v_lshlrev_b32 v20, 5, v4")
    e("v_lshl_add_u32 v20, v5, 4, v20")
    e("v_add_u32 v20, s13, v20")
    e("v_lshlrev_b32 v21, 4, v4")
    e(f"v_add_u32 v21, {256*4}, v21")
    e("v_lshlrev_b32 v22, 3, v4")
    e(f"v_add_u32 v22, {384*4}, v22")
    e("v_cmp_eq_u32 vcc, 1, v5")
    e("v_cndmask_b32 v23, v21, v22, vcc")
    e("v_add_u32 v21, 8, v21")
    e(f"v_add_u32 v22, {64*4}, v22")
    e("v_cndmask_b32 v24, v21, v22, vcc")
    e("v_add_u32 v23, s13, v23")
    e("v_add_u32 v24, s13, v24")
    e("v_lshlrev_b32 v25, 2, v4")
    e("v_lshl_add_u32 v25, v5, 9, v25")
    e("v_add_u32 v25, s13, v25")
    e("ds_write_b128 v20, v[100:103]")
    e("ds_write_b64 v23, v[104:105]")
    e("ds_write_b64 v24, v[106:107]")
    for j in range(4):
        e(f"ds_write_b32 v25, v{108+j} offset:{512*4+128*j}")
    e("v_lshlrev_b32 v26, 3, v0")
    for k in range(9):
        e(f"v_add_u32 v{28+k}, {k-1}, v26")
    e("v_max_i32 v28, 0, v28")
    for k in range(9):
        e(f"v_cvt_f32_u32 v{40+k}, v{28+k}")
    e("v_cmp_gt_u32 vcc, 32, v0")
    for k in range(0, 9, 2):
        k2 = min(k+1, 8)
        e(f"v_cvt_pk_bf16_f32 v50, v{40+k}, v{40+k2}")
        e(f"v_and_b32 v{40+k}, 0xffff, v50")
        if k2 != k: e(f"v_lshrrev_b32 v{40+k2}, 16, v50")
    for k in range(9):
        e(f"v_subrev_u32 v{40+k}, {0x4300-128}, v{40+k}")
        e(f"v_cndmask_b32 v{40+k}, v{40+k}, v{28+k}, vcc")
        e(f"v_lshlrev_b32 v{40+k}, 2, v{40+k}")
    e("s_waitcnt lgkmcnt(0)")
    e("s_barrier")
    for k in range(9):
        for w in range(4):
            e(f"ds_read_b32 v{52+4*k+w}, v{40+k} offset:{2048+3072*w}")
    for k in range(9):
        if k == 0: e("s_waitcnt lgkmcnt(15)")
        if k == 5: e("s_waitcnt lgkmcnt(0)")
        if k < 5 and k > 0: pass
        b = 52+4*k
        if k == 0:
            pass
        e(f"v_add_f32 v{b}, v{b}, v{b+1}")
        e(f"v_add_f32 v{b+2}, v{b+2}, v{b+3}")
        e(f"v_add_f32 v{b}, v{b}, v{b+2}")
        e(f"v_mul_f32 v{28+k}, v{b}, v15")
    e("v_cmp_eq_u32 vcc, 0, v0")
    e("v_cndmask_b32 v28, v28, v7, vcc")
    for i in range(4):
        e(f"v_cvt_pk_bf16_f32 v{40+i}, v{29+2*i}, v{30+2*i}")
        e(f"v_cvt_pk_bf16_f32 v{44+i}, v{28+2*i}, v{29+2*i}")
    e(f"s_mul_i32 s5, s4, {KB_CH}")
    e(f"s_add_u32 s5, s5, {WS_KB}")
    e(f"s_add_u32 s6, s5, {KB_COPY}")
    e("v_lshlrev_b32 v26, 4, v0")
    e("buffer_store_dwordx4 v[40:43], v26, s[44:47], s5 offen offset:16")
    e("buffer_store_dwordx4 v[44:47], v26, s[44:47], s6 offen offset:16")
    for i in range(4):
        e(f"v_mov_b32 v{48+i}, 0")
    e("s_and_saveexec_b64 s[10:11], vcc")
    e("s_cbranch_execz L_prep_end")
    e("buffer_store_dwordx4 v[48:51], v26, s[44:47], s5 offen")
    e("buffer_store_dwordx4 v[48:51], v26, s[44:47], s6 offen")
    e.label("L_prep_end")
    e("s_endpgm")
    return dict(name=name, grid=PREP_WGS, block=256, lds=PREP_LDS, vgpr=116)
```

```python
import sys, importlib
sys.path.insert(0, "gen")
from emit import *
from layout import *

HEADER = open("interleave_layers__ssm_conv_s4d__dense_activation_mish__prompt.s.ref").read().split("; Override launch")[0]

def build(gens, order, path):
    e = E()
    infos = {}
    for g in gens:
        info = g(e)
        infos[info["name"]] = info
    out = HEADER
    for n in order:
        i = infos[n]
        out += f"; @launch kernel={n} grid=({i['grid']},1,1) block=({i['block']},1,1) lds={i['lds']}\n"
    out += '.amdgcn_target "amdgcn-amd-amdhsa--gfx950"\n.text\n'
    out += e.text()
    out += '.section .rodata,"a"\n'
    for n, i in infos.items():
        out += kd(n, i["vgpr"], i.get("sgpr", 96), i.get("accum"))
    open(path, "w").write(out)
    print("wrote", path, len(out), "bytes; nops inserted", e.nops)
    return infos
```

```python
import sys
from top import *
from prep import *
from conv import *
from gemm1 import *
from gemm2 import *
path = sys.argv[1] if len(sys.argv) > 1 else "full.s"
build([gen_prep,
       lambda e: gen_conv(e, "conv1_kernel", WS_XT[0], WS_XT[1], WS_ST0),
       lambda e: gen_gemm1(e, "gemm1a_kernel", WS_XT[1]),
       lambda e: gen_gemm2(e, "gemm2a_kernel", WS_XT[1], WS_XT[2], False, depth=5),
       lambda e: gen_conv(e, "conv2_kernel", WS_XT[2], WS_XT[3], WS_ST2),
       lambda e: gen_gemm1(e, "gemm1b_kernel", WS_XT[3]),
       lambda e: gen_gemm2(e, "gemm2b_kernel", WS_XT[3], 0, True, depth=5),
       ],
      ["prep_kernel", "conv1_kernel", "gemm1a_kernel", "gemm2a_kernel", "conv2_kernel", "gemm1b_kernel", "gemm2b_kernel"], path)
```

```python
from emit import *
from layout import *

KC_STRIDE = 4160
KC_BASE = 0
U_BASE = 8 * KC_STRIDE
U_CH = 4608
Z_BASE = U_BASE + 2 * U_CH
Z_CH = 8192
CONV_LDS = Z_BASE + 2 * Z_CH

def shells():
    out = []
    for n in range(8):
        sh = []
        for o in range(n):
            if n + o <= 7:
                sh.append((n, o)); sh.append((o, n))
        if 2 * n <= 7:
            sh.append((n, n))
        out.append(sh)
    return out

def gen_conv(e, name, xin, xout, st, kidx=1):
    kbegin(e, name)
    L = f"L_{name}"
    e("s_cmp_ge_u32 s2, 256")
    e(f"s_cbranch_scc1 {L}_end")
    prof_stamp(e, 0)
    e("s_load_dwordx2 s[42:43], s[0:1], 104")
    e("s_load_dwordx2 s[28:29], s[0:1], 48")
    e("v_and_b32 v1, 63, v0")
    e("v_lshrrev_b32 v2, 6, v0")
    e("v_lshlrev_b32 v6, 5, v0")
    e("v_readfirstlane_b32 s3, v2")
    e("v_lshlrev_b32 v7, 4, v0")
    e("v_lshlrev_b32 v8, 4, v1")
    e("s_lshr_b32 s4, s3, 1")
    e("s_and_b32 s5, s3, 1")
    e("s_lshl_b32 s6, s2, 13")
    e(f"s_add_u32 s7, s6, {xin}")
    e(f"s_add_u32 s8, s6, {xin+4096}")
    e("s_lshl_b32 s9, s2, 1")
    e("s_add_u32 s9, s9, s4")
    e(f"s_mul_i32 s10, s9, {KB_CH}")
    e("s_lshl_b32 s11, s5, 2")
    e("s_sub_u32 s10, s10, s11")
    e(f"s_add_u32 s10, s10, {WS_KB+16}")
    e(f"s_add_u32 s11, s10, {KB_COPY}")
    e(f"s_mul_i32 s12, s3, {2*KC_STRIDE}")
    e(f"s_add_u32 s12, s12, {KC_BASE+32}")
    e("s_lshl_b32 s13, s2, 2")
    e(f"s_mov_b32 s14, {st}")
    e(f"s_mov_b32 s15, {st+8192}")
    e("s_waitcnt lgkmcnt(0)")
    e("s_load_dword s30, s[28:29], s13")
    srd(e, 44, 42, WS_SIZE)
    e("buffer_load_dwordx4 v[10:13], v6, s[44:47], s14 offen")
    e("buffer_load_dwordx4 v[14:17], v6, s[44:47], s14 offen offset:16")
    e("buffer_load_dwordx4 v[18:21], v6, s[44:47], s15 offen")
    e("buffer_load_dwordx4 v[22:25], v6, s[44:47], s15 offen offset:16")
    e("buffer_load_dwordx4 v[26:29], v7, s[44:47], s7 offen")
    e("buffer_load_dwordx4 v[30:33], v7, s[44:47], s8 offen")
    e("s_mov_b32 m0, s12")
    for j in range(4):
        e(f"buffer_load_dwordx4 v8, s[44:47], s10 offen offset:{1024*j} lds")
    e(f"s_add_u32 m0, s12, {KC_STRIDE}")
    for j in range(4):
        e(f"buffer_load_dwordx4 v8, s[44:47], s11 offen offset:{1024*j} lds")
    for i in range(4):
        e(f"v_mov_b32 v{36+i}, 0")
    e("v_lshrrev_b32 v9, 5, v1")
    e(f"v_mul_u32_u24 v9, {U_CH}, v9")
    e("v_and_b32 v34, 31, v1")
    e("v_lshl_add_u32 v9, v34, 4, v9")
    e(f"ds_write_b128 v9, v[36:39] offset:{U_BASE}")
    e("v_bfe_u32 v9, v1, 1, 3")
    e(f"v_mul_u32_u24 v9, {KC_STRIDE}, v9")
    e("v_and_b32 v34, 1, v1")
    e("v_lshl_add_u32 v9, v34, 4, v9")
    e(f"ds_write_b128 v9, v[36:39] offset:{KC_BASE}")
    e("v_lshrrev_b32 v34, 4, v1")
    e("v_and_b32 v35, 15, v1")
    e("v_bfe_u32 v2, v1, 2, 2")
    e(f"v_mul_u32_u24 v2, {KC_STRIDE}, v2")
    e("v_lshl_add_u32 v2, v34, 4, v2")
    e("v_and_b32 v9, 3, v1")
    e("v_lshl_add_u32 v2, v9, 3, v2")
    e(f"s_mul_i32 s16, s4, {4*KC_STRIDE}")
    e("s_lshl_b32 s17, s5, 8")
    e("s_add_u32 s16, s16, s17")
    e(f"s_add_u32 s16, s16, {KC_BASE+8}")
    e("v_add_u32 v2, s16, v2")
    e("v_lshlrev_b32 v3, 5, v35")
    e("v_lshlrev_b32 v9, 4, v34")
    e("v_sub_u32 v3, v3, v9")
    e(f"s_mul_i32 s16, s4, {U_CH}")
    e("s_sub_u32 s16, s16, s17")
    e(f"s_add_u32 s16, s16, {U_BASE+528-192}")
    e("v_add_u32 v3, s16, v3")
    e("v_lshl_add_u32 v4, v35, 6, v9")
    e(f"s_lshl_b32 s16, s4, 13")
    e(f"s_add_u32 s16, s16, {Z_BASE}")
    e("v_add_u32 v4, s16, v4")
    e("v_lshlrev_b32 v5, 5, v35")
    e("v_lshl_add_u32 v5, v34, 3, v5")
    e("s_lshl_b32 s18, s9, 12")
    e(f"s_add_u32 s18, s18, {xout}")
    e("s_mov_b32 s20, 0x3b000000")
    e("s_mov_b32 s21, 0x3b000000")
    e("s_mov_b32 s22, 0x3727c5ac")
    e("s_waitcnt vmcnt(10)")
    prof_stamp(e, 1)
    for p in range(4):
        e(f"v_pk_mul_f32 v[{10+2*p}:{11+2*p}], v[{10+2*p}:{11+2*p}], s[20:21]")
        e(f"v_pk_mul_f32 v[{18+2*p}:{19+2*p}], v[{18+2*p}:{19+2*p}], s[20:21]")
    for p in range(4):
        e(f"v_pk_fma_f32 v[{18+2*p}:{19+2*p}], v[{10+2*p}:{11+2*p}], v[{10+2*p}:{11+2*p}], v[{18+2*p}:{19+2*p}] neg_lo:[1,0,0] neg_hi:[1,0,0]")
    for r in range(8):
        e(f"v_max_f32 v{18+r}, 0, v{18+r}")
        e(f"v_add_f32 v{18+r}, s22, v{18+r}")
    for r in range(8):
        e(f"v_rsq_f32 v{18+r}, v{18+r}")
    for p in range(4):
        e(f"v_pk_mul_f32 v[{10+2*p}:{11+2*p}], v[{10+2*p}:{11+2*p}], v[{18+2*p}:{19+2*p}] neg_lo:[1,0] neg_hi:[1,0]")
    e("s_waitcnt lgkmcnt(0)")
    e("s_lshl_b32 s24, s30, 16")
    e("s_mov_b32 s25, s24")
    e("s_and_b32 s26, s30, 0xffff0000")
    e("s_mov_b32 s27, s26")
    for ch in range(2):
        e(f"s_waitcnt vmcnt({9-ch})")
        X = 40 + 16*ch
        for p in range(4):
            src = 26 + 4*ch + p
            e(f"v_lshlrev_b32 v{X+2*p}, 16, v{src}")
            e(f"v_and_b32 v{X+2*p+1}, 0xffff0000, v{src}")
        for p in range(4):
            e(f"v_pk_fma_f32 v[{X+8+2*p}:{X+9+2*p}], v[{X+2*p}:{X+1+2*p}], v[{18+2*p}:{19+2*p}], v[{10+2*p}:{11+2*p}]")
        for p in range(4):
            e(f"v_cvt_pk_bf16_f32 v{26+4*ch+p}, v{X+8+2*p}, v{X+9+2*p}")
        e(f"ds_write_b128 v7, v[{26+4*ch}:{29+4*ch}] offset:{U_BASE+512+ch*U_CH}")
        for p in range(4):
            e(f"v_pk_fma_f32 v[{X+2*p}:{X+1+2*p}], v[{X+8+2*p}:{X+9+2*p}], s[{24+2*ch}:{25+2*ch}], v[{X+2*p}:{X+1+2*p}]")
        e(f"ds_write_b128 v6, v[{X}:{X+3}] offset:{Z_BASE+ch*Z_CH}")
        e(f"ds_write_b128 v6, v[{X+4}:{X+7}] offset:{Z_BASE+ch*Z_CH+16}")
    ACC = 192
    prof_stamp(e, 2)
    e("s_waitcnt vmcnt(0) lgkmcnt(0)")
    e("s_barrier")
    prof_stamp(e, 3)
    if PROF["on"]: e("s_waitcnt lgkmcnt(0)")
    e("s_cmp_eq_u32 s5, 0")
    e(f"s_cbranch_scc1 {L}_i0")
    for I in range(4):
        e(f"ds_read_b128 v[{ACC+4*I}:{ACC+4*I+3}], v4 offset:{1024*I}")
    for r in range(16, 32):
        e(f"v_mov_b32 v{ACC+r}, 0")
    e(f"s_branch {L}_i1")
    e.label(f"{L}_i0")
    for I in range(4, 8):
        e(f"ds_read_b128 v[{ACC+4*I}:{ACC+4*I+3}], v4 offset:{1024*I}")
    for r in range(16):
        e(f"v_mov_b32 v{ACC+r}, 0")
    e.label(f"{L}_i1")
    def A(st_, n): return 64 + 64*st_ + 4*n
    def B(st_, n): return 96 + 64*st_ + 4*n
    def loads(rr):
        st_ = rr & 1
        ops = []
        for n in range(8):
            a = A(st_, n); b = B(st_, n)
            ops.append(f"ds_read_b64_tr_b16 v[{a}:{a+1}], v2 offset:{8+512*n+64*rr}")
            ops.append(f"ds_read_b64_tr_b16 v[{a+2}:{a+3}], v2 offset:{512*n+64*rr}")
            ops.append(f"ds_read_b128 v[{b}:{b+3}], v3 offset:{512*n+64*(3-rr)}")
        return ops
    sh = shells()
    first = loads(0)
    issued = 0
    for rr in range(4):
        st_ = rr & 1
        nxt = loads(rr+1) if rr < 3 else []
        if rr == 0:
            q = list(first)
            for _ in range(12):
                e(q.pop(0))
            iss = 12
            pend = q + nxt
            total_issued = 12
            k = 0
            for n in range(8):
                need = 3*(n+1)
                while total_issued < need:
                    e(pend.pop(0)); total_issued += 1
                e(f"s_waitcnt lgkmcnt({min(15, total_issued-need)})")
                for (ta, sb) in sh[n]:
                    I = ta + sb
                    e(f"v_mfma_f32_16x16x32_bf16 v[{ACC+4*I}:{ACC+4*I+3}], v[{A(st_,ta)}:{A(st_,ta)+3}], v[{B(st_,sb)}:{B(st_,sb)+3}], v[{ACC+4*I}:{ACC+4*I+3}]")
                    if pend and total_issued - need < 14:
                        e(pend.pop(0)); total_issued += 1
            while pend:
                e(pend.pop(0))
        else:
            e("s_waitcnt lgkmcnt(0)")
            pend = list(nxt)
            k = 0
            for n in range(8):
                for (ta, sb) in sh[n]:
                    I = ta + sb
                    e(f"v_mfma_f32_16x16x32_bf16 v[{ACC+4*I}:{ACC+4*I+3}], v[{A(st_,ta)}:{A(st_,ta)+3}], v[{B(st_,sb)}:{B(st_,sb)+3}], v[{ACC+4*I}:{ACC+4*I+3}]")
                    if pend:
                        e(pend.pop(0))
    prof_stamp(e, 4)
    e("s_cmp_eq_u32 s5, 0")
    e(f"s_cbranch_scc1 {L}_e0")
    for hs in (1, 0):
        send = range(4) if hs == 1 else range(4, 8)
        keep = range(4, 8) if hs == 1 else range(4)
        if hs == 0:
            e.label(f"{L}_e0")
        for I in send:
            e(f"ds_write_b128 v4, v[{ACC+4*I}:{ACC+4*I+3}] offset:{1024*I}")
        e("s_waitcnt lgkmcnt(0)")
        e("s_barrier")
        for j, I in enumerate(keep):
            e(f"ds_read_b128 v[{64+4*j}:{67+4*j}], v4 offset:{1024*I}")
        for j, I in enumerate(keep):
            e(f"s_waitcnt lgkmcnt({3-j})")
            a = ACC + 4*I
            e(f"v_pk_add_f32 v[{a}:{a+1}], v[{a}:{a+1}], v[{64+4*j}:{65+4*j}]")
            e(f"v_pk_add_f32 v[{a+2}:{a+3}], v[{a+2}:{a+3}], v[{66+4*j}:{67+4*j}]")
            e(f"v_cvt_pk_bf16_f32 v{a}, v{a}, v{a+1}")
            e(f"v_cvt_pk_bf16_f32 v{a+1}, v{a+2}, v{a+3}")
            e(f"buffer_store_dwordx2 v[{a}:{a+1}], v5, s[44:47], s18 offen offset:{512*I}")
        prof_end(e, 5, kidx)
        e("s_endpgm")
    e.label(f"{L}_end")
    e("s_endpgm")
    return dict(name=name, grid=256, block=256, lds=CONV_LDS, vgpr=224)
```

```python
import re

TRANS = ("v_exp_f32", "v_log_f32", "v_rcp_f32", "v_rsq_f32", "v_sqrt_f32", "v_sin_f32", "v_cos_f32",
         "v_rcp_iflag_f32", "v_exp_f16", "v_log_f16", "v_rcp_f16", "v_rsq_f16", "v_sqrt_f16")
RMW = ("v_fmac_f32", "v_dot2c_f32_bf16", "v_dot2c_f32_f16", "v_pk_fmac_f16", "v_fmac_f16", "v_fmac_f64")

_reg_re = re.compile(r"(?<![\w.])([vas])\[(\d+):(\d+)\]|(?<![\w.])([vas])(\d+)(?![\w])|(?<![\w])(vcc|exec|m0)(?:_lo|_hi)?(?![\w])")

def regs_of(op):
    out = set()
    for m in _reg_re.finditer(op):
        if m.group(1):
            for i in range(int(m.group(2)), int(m.group(3)) + 1):
                out.add((m.group(1), i))
        elif m.group(4):
            out.add((m.group(4), int(m.group(5))))
        else:
            out.add(("x", m.group(6)))
    return out

def split_ops(s):
    ops, depth, cur = [], 0, ""
    for ch in s:
        if ch in "[(":
            depth += 1
        if ch in "])":
            depth -= 1
        if ch == "," and depth == 0:
            ops.append(cur.strip()); cur = ""
        else:
            cur += ch
    if cur.strip():
        ops.append(cur.strip())
    return ops

class Ins:
    def __init__(self, text):
        self.text = text
        t = text.split(";")[0].strip()
        parts = t.split(None, 1)
        self.op = parts[0]
        op = self.op
        if op.endswith("_e32") or op.endswith("_e64") or op.endswith("_dpp"):
            op = op[:-4]
        self.base = op
        rest = parts[1] if len(parts) > 1 else ""
        ops = split_ops(rest)
        self.mods = ""
        if ops:
            sp = ops[-1].split(None, 1)
            if len(sp) > 1 and not ops[-1].startswith("-") :
                ops[-1] = sp[0]; self.mods = sp[1]
            elif len(sp) > 1:
                ops[-1] = sp[0]; self.mods = sp[1]
        self.ops = ops
        self.w = set(); self.r = set()
        self.kind = "other"
        self.srcA = self.srcB = self.srcC = set()
        self.states = 1
        R = [regs_of(o) for o in ops]
        if op.startswith("v_mfma"):
            self.kind = "mfma"
            self.w = R[0]; self.srcA = R[1]; self.srcB = R[2]; self.srcC = R[3]
            self.r = R[1] | R[2] | R[3]
            if "32x32x16" in op or "32x32x8" in op or "16x16x4_f32" in op: self.passes = 8
            elif "16x16x32" in op or "16x16x16" in op: self.passes = 4
            elif "32x32x2_f32" in op: self.passes = 16
            else: raise ValueError("unknown mfma " + op)
            self.xdl = not op.endswith("_f32") or "bf16" in op or "f16" in op
            if op.endswith("x2_f32") or op.endswith("x4_f32"): self.xdl = False
        elif op.startswith("v_"):
            self.kind = "valu"
            nd = 1
            if op.startswith("v_add_co") or op.startswith("v_sub_co") or op.startswith("v_addc_co") or op.startswith("v_subb_co") or op.startswith("v_subrev_co") or op.startswith("v_div_scale") or op.startswith("v_mad_u64"):
                nd = 2
            if op == "v_nop":
                nd = 0
            for i in range(nd):
                self.w |= R[i]
            for i in range(nd, len(R)):
                self.r |= R[i]
            if op in RMW: self.r |= R[0]
            if op.startswith("v_permlane") and "swap" in op:
                self.w = R[0] | R[1]; self.r = R[0] | R[1]
            if op.startswith("v_cmpx"):
                self.w.add(("x", "exec"))
            if op.startswith("v_writelane"):
                self.r |= R[0]
            if op.startswith("v_cndmask") and len(ops) == 3:
                self.r.add(("x", "vcc"))
            self.trans = op in TRANS
            self.dpp = any(k in self.mods for k in ("row_", "quad_perm", "wave_", "row_bcast", "row_mirror", "row_half"))
            if self.dpp and "bound_ctrl" not in self.mods:
                self.r |= R[0]
            self.opsel_dst = False
        elif op.startswith("buffer_") or op.startswith("global_") or op.startswith("flat_"):
            self.kind = "vmem"
            is_lds = bool(re.search(r"\blds\b", self.mods)) or "load_lds" in op
            if "load" in op and not is_lds:
                self.w = R[0]
                for x in R[1:]: self.r |= x
            elif "atomic" in op and re.search(r"\bsc0\b", self.mods):
                if op.startswith("buffer_"):
                    self.w = R[0]
                    for x in R: self.r |= x
                else:
                    self.w = R[0]
                    for x in R[1:]: self.r |= x
            else:
                for x in R: self.r |= x
            if is_lds: self.r.add(("x", "m0"))
            self.is_lds = is_lds
            self.wide_store = ("store" in op) and ("x4" in op or "x3" in op)
            if self.wide_store:
                self.store_data = R[0] if op.startswith("buffer_") else R[1]
        elif op.startswith("ds_"):
            self.kind = "ds"
            if op.startswith("ds_read") or op.startswith("ds_bpermute") or op.startswith("ds_permute") or op.startswith("ds_swizzle") or "_rtn" in op:
                self.w = R[0]
                for x in R[1:]: self.r |= x
            else:
                for x in R: self.r |= x
        elif op.startswith("s_"):
            self.kind = "salu"
            if op == "s_nop":
                self.states = int(ops[0], 0) + 1
            elif op.startswith("s_cmp") or op.startswith("s_cbranch") or op in ("s_waitcnt", "s_barrier", "s_branch", "s_endpgm", "s_setprio", "s_sleep", "s_bitcmp0_b32", "s_bitcmp1_b32"):
                for x in R: self.r |= x
            else:
                if R:
                    self.w = R[0]
                    for x in R[1:]: self.r |= x
                if "saveexec" in op:
                    self.w.add(("x", "exec"))
            if op.startswith("s_load") or op.startswith("s_buffer_load") or op.startswith("s_memtime") or op.startswith("s_memrealtime"):
                self.kind = "smem"

def isv(regs):
    return {r for r in regs if r[0] in "va"}
def iss(regs):
    return {r for r in regs if r[0] == "s" or r == ("x", "vcc")}

def required(p, c):
    need = 0
    if p.kind == "valu":
        pv = isv(p.w); ps = iss(p.w)
        if c.kind == "mfma" and pv & c.r: need = max(need, 2)
        if c.kind == "valu":
            if p.trans and not c.trans and pv & (c.r | c.w): need = max(need, 1)
            if p.trans and c.trans and pv & c.r: need = max(need, 1)
            if c.base.startswith("v_readfirstlane") or c.base.startswith("v_readlane"):
                if pv & c.r: need = max(need, 1)
                if c.base.startswith("v_readlane") and ps & c.r: need = max(need, 4)
            if c.base.startswith("v_writelane") and ps & c.r: need = max(need, 4)
            if c.dpp and pv & c.r: need = max(need, 2)
            if c.base.startswith("v_permlane") and pv & c.r: need = max(need, 2)
            if ps & c.r: need = max(need, 2)
            if c.base.startswith("v_div_fmas") and ("x", "vcc") in p.w: need = max(need, 4)
            if ("x", "exec") in p.w:
                if c.dpp: need = max(need, 5)
                if c.base.startswith("v_read") or c.base.startswith("v_writelane") or c.base.startswith("v_permlane"): need = max(need, 4)
            if "op_sel" in p.mods and not p.base.startswith("v_pk_") and pv & (c.r | c.w): need = max(need, 1)
            if "dst_sel" in p.mods and pv & (c.r | c.w): need = max(need, 1)
            if p.base.startswith("v_dot") :
                if pv & (c.r | c.w):
                    same = c.base == p.base
                    if same and not (pv & (regs_of(c.ops[1]) | regs_of(c.ops[2]))):
                        pass
                    else:
                        need = max(need, 3)
        if p.base.startswith("v_dot") and c.kind in ("vmem", "ds", "mfma") and pv & c.r: need = max(need, 3)
        if c.kind == "mfma" and ("x", "exec") in p.w: need = max(need, 4)
        if c.kind == "vmem" and ps & c.r: need = max(need, 5)
        if c.kind in ("salu", "smem") and ps & c.r: need = max(need, 1)
    if p.kind == "mfma":
        n = p.passes
        tab_ab = {2: 5, 4: 8, 8: 12, 16: 20} if p.xdl else {2: 4, 4: 6, 8: 10, 16: 18}
        tab_c = {2: 4, 4: 6, 8: 10, 16: 18} if p.xdl else {2: 2, 4: 4, 8: 8, 16: 16}
        if c.kind == "mfma":
            if p.w & (c.srcA | c.srcB): need = max(need, tab_ab[n])
            if p.w & c.srcC:
                if not (p.w == c.srcC and p.passes == c.passes and p.xdl == c.xdl): need = max(need, tab_c[n])
                elif n == 2: need = max(need, 2)
            elif p.w & c.w: need = max(need, tab_c[n])
        elif c.kind in ("valu", "vmem", "ds"):
            if p.w & (c.r | c.w): need = max(need, tab_ab[n])
            if c.kind == "valu" and p.xdl and p.srcC & c.w: need = max(need, {2: 1, 4: 3, 8: 7, 16: 15}[n])
    if p.kind == "salu":
        if ("x", "m0") in p.w and ((c.kind == "vmem" and c.is_lds) or c.base.startswith("s_movrel") or "addtid" in c.base or c.base.startswith("s_sendmsg")):
            need = max(need, 1)
    if p.kind == "vmem" and getattr(p, "wide_store", False):
        if p.store_data & c.w:
            need = max(need, 2 if c.kind == "valu" else 1)
    return need

class E:
    def __init__(self):
        self.lines = []
        self.hist = []
        self.labels = {}
        self.ins = []
        self.nops = 0
        self.fwd = {}
    def raw(self, text):
        self.lines.append(text)
    def comment(self, text):
        self.lines.append("    ; " + text)
    def _push(self, ins):
        for h in self.hist:
            h[1] += ins.states
        self.hist = [h for h in self.hist if h[1] < 24]
        self.hist.append([ins, 0])
        self.ins.append(ins)
        self.lines.append("    " + ins.text)
    def _nop(self, n):
        while n > 0:
            k = min(n, 16)
            self._push(Ins(f"s_nop {k-1}"))
            self.nops += 1
            n -= k
    def __call__(self, text):
        for line in text.strip().split("\n"):
            line = line.strip()
            if not line or line.startswith(";"):
                if line: self.lines.append("    " + line)
                continue
            if line.endswith(":"):
                self.label(line[:-1]); continue
            if line.startswith("."):
                self.lines.append(line); continue
            ins = Ins(line)
            need = 0
            for p, el in self.hist:
                need = max(need, required(p, ins) - el)
            if need > 0:
                self._nop(need)
            if ins.base.startswith("s_cbranch") or ins.base == "s_branch":
                tgt = ins.ops[0]
                if tgt in self.labels:
                    idx = self.labels[tgt]
                    extra = 0
                    acc = 1
                    for c in self.ins[idx: idx + 24]:
                        for p, el in self.hist:
                            extra = max(extra, required(p, c) - el - acc)
                        acc += c.states
                        if acc > 24: break
                    if extra > 0:
                        self._nop(extra)
                else:
                    self.fwd.setdefault(tgt, []).append([[p, el + 1] for p, el in self.hist])
            self._push(ins)
    def label(self, name):
        for snap in self.fwd.pop(name, []):
            self.hist += [[p, el] for p, el in snap]
        self.labels[name] = len(self.ins)
        self.lines.append(name + ":")
    def reset_hist(self):
        self.hist = []
    def drain(self, n=20):
        self._nop(n)
    def text(self):
        return "\n".join(self.lines) + "\n"

def srd(e, d, base, nbytes):
    e(f"s_mov_b32 s{d}, s{base}")
    e(f"s_and_b32 s{d+1}, s{base+1}, 0xffff")
    e(f"s_mov_b32 s{d+2}, {nbytes}")
    e(f"s_mov_b32 s{d+3}, 0x20000")

def srd_off(e, d, base, off, nbytes):
    e(f"s_add_u32 s{d}, s{base}, {off}")
    e(f"s_addc_u32 s{d+1}, s{base+1}, 0")
    e(f"s_and_b32 s{d+1}, s{d+1}, 0xffff")
    e(f"s_mov_b32 s{d+2}, {nbytes}")
    e(f"s_mov_b32 s{d+3}, 0x20000")

def kd(name, vgpr, sgpr=96, accum=None):
    if accum is None:
        accum = (min(vgpr, 256) + 3) // 4 * 4
    return f""".p2align 6
.amdhsa_kernel {name}
  .amdhsa_next_free_vgpr {vgpr}
  .amdhsa_next_free_sgpr {sgpr}
  .amdhsa_accum_offset {accum}
  .amdhsa_group_segment_fixed_size 0
  .amdhsa_kernarg_size 112
  .amdhsa_user_sgpr_count 2
  .amdhsa_user_sgpr_kernarg_segment_ptr 1
  .amdhsa_system_sgpr_workgroup_id_x 1
.end_amdhsa_kernel
"""
def kbegin(e, name):
    e.reset_hist()
    e.raw(f".globl {name}\n.p2align 8\n.type {name},@function")
    e.label(name)

PROF = {"on": False, "k": 0}
WS_PROF = 0x1C00000
def prof_stamp(e, i):
    if PROF["on"]:
        e(f"s_memrealtime s[{76+2*i}:{77+2*i}]")
        if i == 0: e("s_memtime s[92:93]")
def prof_end(e, n, kidx):
    if not PROF["on"]:
        return
    e("s_mov_b64 exec, -1")
    e("s_waitcnt vmcnt(0)")
    e(f"s_memrealtime s[{76+2*n}:{77+2*n}]")
    e("s_memtime s[94:95]")
    e("s_waitcnt lgkmcnt(0)")
    e("s_sub_u32 s94, s94, s92")
    e("v_mov_b32 v17, s94")
    e("s_lshl_b32 s74, s2, 2")
    e("s_add_u32 s74, s74, s3")
    e("s_lshl_b32 s74, s74, 6")
    e(f"s_add_u32 s74, s74, {WS_PROF + kidx*1024*256}")
    e("v_mov_b32 v0, 0")
    for i in range(n+1):
        e(f"v_mov_b32 v{1+i}, s{76+2*i}")
    e("s_mov_b64 exec, 1")
    for i in range(n+1):
        e(f"buffer_store_dword v{1+i}, v0, s[44:47], s74 offen offset:{4*i}")
    e("buffer_store_dword v17, v0, s[44:47], s74 offen offset:60")
```

```python
from emit import *
from layout import *

G1_W = 0
G1_X = 114688
G1_LDS = 163840

def gen_gemm1(e, name, xin, kidx=2):
    kbegin(e, name)
    L = f"L_{name}"
    e("s_cmp_ge_u32 s2, 256")
    e(f"s_cbranch_scc1 {L}_end")
    prof_stamp(e, 0)
    e("s_load_dwordx2 s[42:43], s[0:1], 104")
    e("v_and_b32 v1, 63, v0")
    e("v_lshrrev_b32 v2, 6, v0")
    e("v_lshlrev_b32 v3, 4, v1")
    e("v_readfirstlane_b32 s3, v2")
    e("s_and_b32 s4, s2, 7")
    e("s_lshr_b32 s5, s2, 3")
    e("s_lshl_b32 s4, s4, 1")
    e("s_and_b32 s6, s5, 1")
    e("s_add_u32 s4, s4, s6")
    e("s_lshr_b32 s5, s5, 1")
    e("v_lshrrev_b32 v4, 2, v1")
    e("v_lshlrev_b32 v4, 12, v4")
    e("v_bfe_u32 v5, v1, 4, 1")
    e("v_lshlrev_b32 v5, 1, v5")
    e("v_and_b32 v6, 3, v1")
    e("v_xor_b32 v5, v5, v6")
    e("v_lshl_add_u32 v4, v5, 4, v4")
    e("s_lshl_b32 s7, s4, 8")
    e("s_lshl_b32 s8, s3, 6")
    e("s_add_u32 s7, s7, s8")
    e(f"s_add_u32 s7, s7, {xin}")
    e("s_mul_i32 s8, s3, 12288")
    e(f"s_add_u32 s8, s8, {G1_X}")
    e("s_mul_i32 s9, s5, 114688")
    e(f"s_add_u32 s9, s9, {WS_W1P}")
    e("s_lshl_b32 s10, s3, 12")
    e("s_mul_i32 s11, s3, 3072")
    e("s_add_u32 s11, s11, 16384")
    e("s_waitcnt lgkmcnt(0)")
    srd(e, 44, 42, WS_SIZE)
    ops = []
    def X(s):
        for j in range(4):
            e(f"s_add_u32 m0, s8, {(s % 3)*4096 + 1024*j}")
            e("buffer_load_dwordx4 v4, s[44:47], s7 offen lds")
            e("s_add_u32 s7, s7, 65536")
            ops.append(("X", s))
    def W(kk, part):
        off, n = ("s10", 4) if part == 0 else ("s11", 3)
        e(f"s_add_u32 m0, {off}, {G1_W + 28672*kk}")
        e(f"s_add_u32 s12, {off}, {28672*kk}")
        e("s_add_u32 s12, s12, s9")
        for j in range(n):
            e(f"buffer_load_dwordx4 v3, s[44:47], s12 offen offset:{1024*j} lds")
            ops.append(("W", 2*kk+part))
    def wait_stage(s):
        last = max(i for i, t in enumerate(ops) if t == ("X", s) or t == ("W", s))
        e(f"s_waitcnt vmcnt({len(ops)-1-last})")
    X(0); W(0, 0); X(1); W(0, 1); X(2); W(1, 0); W(1, 1)
    SB = 140
    e("v_lshrrev_b32 v5, 4, v1")
    e("v_lshlrev_b32 v6, 4, v5")
    e("s_mul_i32 s13, s5, 448")
    e(f"s_add_u32 s14, s13, {WS_S1}")
    e(f"s_add_u32 s15, s13, {WS_B1F}")
    for a in range(7):
        e(f"buffer_load_dwordx4 v[{SB+4*a}:{SB+4*a+3}], v6, s[44:47], s14 offen offset:{64*a}")
        e(f"buffer_load_dwordx4 v[{SB+28+4*a}:{SB+31+4*a}], v6, s[44:47], s15 offen offset:{64*a}")
        ops.append(("S", 0)); ops.append(("S", 0))
    e("v_lshrrev_b32 v7, 2, v1")
    e("v_lshlrev_b32 v7, 6, v7")
    e("v_and_b32 v8, 3, v1")
    e("v_lshl_add_u32 v7, v8, 3, v7")
    e("v_and_b32 v8, 1, v5")
    e("v_lshl_add_u32 v7, v8, 5, v7")
    e("v_add_u32 v7, s8, v7")
    e("v_xor_b32 v8, 32, v7")
    e("v_add_u32 v9, 0xe000, v3")
    ACC = 12
    for r in range(56):
        e(f"v_mov_b32 v{ACC+r}, 0")
    ST = 196
    for r in range(4):
        e(f"v_mov_b32 v{ST+r}, 0")
    e("s_mov_b32 s16, 0x3f803f80")
    def FA(st, a): return 68 + 36*st + 4*a
    def FB(st, j): return 68 + 36*st + 28 + 4*j
    def reads(ks):
        st = ks & 1
        s = ks >> 1
        out = []
        xo = (s % 3)*4096 + (ks & 1)*2048
        for j in range(2):
            b = FB(st, j)
            out.append(f"ds_read_b64_tr_b16 v[{b}:{b+1}], v{7+j} offset:{xo}")
            out.append(f"ds_read_b64_tr_b16 v[{b+2}:{b+3}], v{7+j} offset:{xo+1024}")
        for a in range(7):
            wo = G1_W + 7168*ks + 1024*a
            base = "v3"
            if wo >= 57344:
                wo -= 57344; base = "v9"
            out.append(f"ds_read_b128 v[{FA(st,a)}:{FA(st,a)+3}], {base} offset:{wo}")
        return out
    prof_stamp(e, 1)
    wait_stage(0)
    e("s_barrier")
    prof_stamp(e, 2)
    for r in reads(0):
        e(r)
    refill = {0: [("X", 3), ("W", 2, 0)], 1: [("X", 4), ("W", 2, 1)], 2: [("X", 5), ("W", 3, 0)], 3: [("X", 6), ("W", 3, 1)], 4: [("X", 7)]}
    for ks in range(16):
        st = ks & 1
        if ks == 8: prof_stamp(e, 3)
        e("s_waitcnt lgkmcnt(0)")
        if ks & 1:
            for r in refill.get(ks >> 1, []):
                if r[0] == "X": X(r[1])
                else: W(r[1], r[2])
        nxt = reads(ks+1) if ks < 15 else []
        dots = []
        for j in range(2):
            for r in range(4):
                b = FB(st, j) + r
                dots.append(f"v_dot2_f32_bf16 v{ST+2*j}, v{b}, s16, v{ST+2*j}")
                dots.append(f"v_dot2_f32_bf16 v{ST+2*j+1}, v{b}, v{b}, v{ST+2*j+1}")
        boundary = (ks & 1) and ks < 15
        n = 0
        for a in range(7):
            for j in range(2):
                c = ACC + 4*(2*a+j)
                e(f"v_mfma_f32_16x16x32_bf16 v[{c}:{c+3}], v[{FA(st,a)}:{FA(st,a)+3}], v[{FB(st,j)}:{FB(st,j)+3}], v[{c}:{c+3}]")
                n += 1
                if boundary:
                    if n <= 6:
                        e(dots.pop(0)); e(dots.pop(0))
                    if n == 6:
                        wait_stage((ks+1) >> 1)
                        e("s_barrier")
                    if n >= 6:
                        for _ in range(2 if n < 9 else 1):
                            if nxt: e(nxt.pop(0))
                    if n > 6 and dots: e(dots.pop(0))
                else:
                    if nxt: e(nxt.pop(0))
                    if dots: e(dots.pop(0))
                    if n > 11 and dots: e(dots.pop(0))
        for r in nxt: e(r)
        for d in dots: e(d)
    prof_stamp(e, 4)
    T = 68
    for r in range(4):
        e(f"v_mov_b32 v{T+r}, v{ST+r}")
    for r in range(4):
        e(f"v_permlane16_swap_b32 v{T+r}, v{ST+r}")
    for r in range(4):
        e(f"v_add_f32 v{ST+r}, v{ST+r}, v{T+r}")
    for r in range(4):
        e(f"v_mov_b32 v{T+r}, v{ST+r}")
    for r in range(4):
        e(f"v_permlane32_swap_b32 v{T+r}, v{ST+r}")
    for r in range(4):
        e(f"v_add_f32 v{ST+r}, v{ST+r}, v{T+r}")
    e("s_mov_b32 s17, 0x3b000000")
    e("s_mov_b32 s18, 0x3727c5ac")
    RR = 200
    for j in range(2):
        s_, q_ = ST+2*j, ST+2*j+1
        e(f"v_mul_f32 v{s_}, s17, v{s_}")
        e(f"v_mul_f32 v{q_}, s17, v{q_}")
        e(f"v_fma_f32 v{q_}, -v{s_}, v{s_}, v{q_}")
        e(f"v_max_f32 v{q_}, 0, v{q_}")
        e(f"v_add_f32 v{q_}, s18, v{q_}")
        e(f"v_rsq_f32 v{RR+4*j}, v{q_}")
        e(f"v_mul_f32 v{RR+4*j+2}, -v{s_}, v{RR+4*j}")
    e("s_lshl_b32 s13, s4, 1")
    e("s_lshr_b32 s14, s3, 1")
    e("s_add_u32 s13, s13, s14")
    e("s_mul_i32 s13, s13, 56")
    e("s_lshr_b32 s14, s5, 1")
    e("s_mul_i32 s14, s14, 7")
    e("s_add_u32 s13, s13, s14")
    e("s_lshl_b32 s13, s13, 2")
    e("s_and_b32 s14, s3, 1")
    e("s_lshl_b32 s14, s14, 1")
    e("s_add_u32 s13, s13, s14")
    e("s_lshl_b32 s13, s13, 10")
    e(f"s_add_u32 s13, s13, {WS_ACT}")
    e("s_and_b32 s14, s5, 1")
    e("s_mul_i32 s15, s14, 12288")
    e("s_add_u32 s15, s15, s13")
    e("s_lshl_b32 s14, s14, 3")
    e("s_add_u32 s14, s14, s13")
    e("s_add_u32 s14, s14, 24576")
    e(f"s_mov_b32 s20, {L2E:#x}")
    e(f"s_mov_b32 s21, {L2E:#x}")
    e("s_mov_b32 s22, 2.0")
    e("s_mov_b32 s23, 2.0")
    e("s_mov_b32 s24, -2.0")
    e("s_mov_b32 s25, -2.0")
    e("s_waitcnt vmcnt(0)")
    def mish_group(tiles, tmp):
        prs = []
        for (a, j) in tiles:
            c = ACC + 4*(2*a+j)
            for hh in range(2):
                prs.append((c+2*hh, SB+4*a+2*hh, SB+28+4*a+2*hh, j))
        n = len(prs)
        for i, (c, s_, b_, j) in enumerate(prs):
            t = tmp + 2*i
            e(f"v_pk_fma_f32 v[{t}:{t+1}], v[{s_}:{s_+1}], v[{RR+4*j+2}:{RR+4*j+3}], v[{b_}:{b_+1}] op_sel_hi:[1,0,1]")
        for i, (c, s_, b_, j) in enumerate(prs):
            t = tmp + 2*i
            e(f"v_pk_fma_f32 v[{c}:{c+1}], v[{c}:{c+1}], v[{RR+4*j}:{RR+4*j+1}], v[{t}:{t+1}] op_sel_hi:[1,0,1]")
        for i, (c, s_, b_, j) in enumerate(prs):
            t = tmp + 2*i
            e(f"v_pk_mul_f32 v[{t}:{t+1}], v[{c}:{c+1}], s[20:21]")
        for i in range(2*n):
            e(f"v_exp_f32 v{tmp+i}, v{tmp+i}")
        for i, (c, s_, b_, j) in enumerate(prs):
            t = tmp + 2*i; u = tmp + 2*n + 2*i
            e(f"v_pk_add_f32 v[{u}:{u+1}], v[{t}:{t+1}], s[22:23]")
        for i, (c, s_, b_, j) in enumerate(prs):
            t = tmp + 2*i; u = tmp + 2*n + 2*i
            e(f"v_pk_fma_f32 v[{t}:{t+1}], v[{t}:{t+1}], v[{u}:{u+1}], s[22:23]")
        for i in range(2*n):
            e(f"v_rcp_f32 v{tmp+i}, v{tmp+i}")
        for i, (c, s_, b_, j) in enumerate(prs):
            t = tmp + 2*i
            e(f"v_pk_fma_f32 v[{t}:{t+1}], v[{t}:{t+1}], s[24:25], 1.0 op_sel_hi:[1,1,0]")
        for i, (c, s_, b_, j) in enumerate(prs):
            t = tmp + 2*i
            e(f"v_pk_mul_f32 v[{t}:{t+1}], v[{t}:{t+1}], v[{c}:{c+1}]")
        return prs
    g = 0
    for m in range(3):
        for j in range(2):
            tmp = 68 + 24*(g % 3); g += 1
            mish_group([(2*m, j), (2*m+1, j)], tmp)
            o = tmp + 16
            for i in range(4):
                e(f"v_cvt_pk_bf16_f32 v{o+i}, v{tmp+2*i}, v{tmp+2*i+1}")
            e(f"buffer_store_dwordx4 v[{o}:{o+3}], v3, s[44:47], s15 offen offset:{1024*j}")
        if m < 2: e("s_add_u32 s15, s15, 4096")
    tmp = 68 + 24*(g % 3)
    mish_group([(6, 0), (6, 1)], tmp)
    o = tmp + 16
    for i in range(4):
        e(f"v_cvt_pk_bf16_f32 v{o+i}, v{tmp+2*i}, v{tmp+2*i+1}")
    e(f"buffer_store_dwordx2 v[{o}:{o+1}], v3, s[44:47], s14 offen")
    e(f"buffer_store_dwordx2 v[{o+2}:{o+3}], v3, s[44:47], s14 offen offset:1024")
    prof_stamp(e, 5)
    prof_end(e, 6, kidx)
    e.label(f"{L}_end")
    e("s_endpgm")
    return dict(name=name, grid=256, block=256, lds=G1_LDS, vgpr=208)
```

```python
from emit import *
from layout import *

G2_RS = 272
G2_PART = 64 * G2_RS
G2_LDS = 4 * G2_PART

def gen_gemm2(e, name, xres, xout, final, depth=7, kidx=3):
    kbegin(e, name)
    L = f"L_{name}"
    e("s_cmp_ge_u32 s2, 256")
    e(f"s_cbranch_scc1 {L}_end")
    prof_stamp(e, 0)
    e("s_load_dwordx2 s[42:43], s[0:1], 104")
    if final:
        e("s_load_dwordx2 s[38:39], s[0:1], 88")
    e("v_and_b32 v1, 63, v0")
    e("v_lshrrev_b32 v2, 6, v0")
    e("v_lshlrev_b32 v3, 4, v1")
    e("v_readfirstlane_b32 s3, v2")
    e("s_and_b32 s4, s2, 7")
    e("s_lshr_b32 s5, s2, 3")
    e("s_lshl_b32 s4, s4, 2")
    e("s_and_b32 s6, s5, 3")
    e("s_add_u32 s4, s4, s6")
    e("s_lshr_b32 s5, s5, 2")
    e("s_mul_i32 s6, s3, 57344")
    e("s_mul_i32 s7, s4, 229376")
    e("s_add_u32 s7, s7, s6")
    e(f"s_add_u32 s7, s7, {WS_ACT}")
    e("s_mul_i32 s8, s5, 229376")
    e("s_add_u32 s8, s8, s6")
    e(f"s_add_u32 s8, s8, {WS_W2P}")
    e("s_waitcnt lgkmcnt(0)")
    srd(e, 44, 42, WS_SIZE)
    ACC = 8
    FR = 72
    def FA(ks, t): return FR + 32*(ks % depth) + 4*t
    def FB(ks, t): return FR + 32*(ks % depth) + 16 + 4*t
    def issue(ks):
        for t in range(4):
            e(f"buffer_load_dwordx4 v[{FA(ks,t)}:{FA(ks,t)+3}], v3, s[44:47], s7 offen offset:{1024*t}")
            e(f"buffer_load_dwordx4 v[{FB(ks,t)}:{FB(ks,t)+3}], v3, s[44:47], s8 offen offset:{1024*t}")
        e("s_add_u32 s7, s7, 4096")
        e("s_add_u32 s8, s8, 4096")
    for ks in range(depth):
        issue(ks)
    e("v_and_b32 v4, 15, v1")
    e("v_lshrrev_b32 v5, 4, v0")
    e("v_lshlrev_b32 v6, 14, v4")
    e("v_lshl_add_u32 v6, v5, 3, v6")
    e("s_lshl_b32 s9, s5, 18")
    e("s_lshl_b32 s10, s4, 7")
    e("s_add_u32 s9, s9, s10")
    e(f"s_add_u32 s10, s9, {xres}")
    for r in range(64):
        e(f"v_mov_b32 v{ACC+r}, 0")
    for ks in range(14):
        rem = min(depth, 14-ks) - 1
        if ks == 0: prof_stamp(e, 1)
        e(f"s_waitcnt vmcnt({8*rem})")
        if ks == 0: prof_stamp(e, 2)
        if ks == 7: prof_stamp(e, 3)
        for lt in range(4):
            for dt in range(4):
                c = ACC + 4*(4*lt+dt)
                e(f"v_mfma_f32_16x16x32_bf16 v[{c}:{c+3}], v[{FA(ks,lt)}:{FA(ks,lt)+3}], v[{FB(ks,dt)}:{FB(ks,dt)+3}], v[{c}:{c+3}]")
        if ks + depth < 14:
            issue(ks + depth)
    prof_stamp(e, 4)
    RES = 72
    for dd in range(4):
        e(f"s_add_u32 s11, s10, {4096*dd}")
        e(f"buffer_load_dwordx2 v[{RES+2*dd}:{RES+2*dd+1}], v6, s[44:47], s11 offen")
    e("v_lshrrev_b32 v7, 4, v1")
    e(f"v_mul_u32_u24 v2, {G2_RS}, v4")
    e("v_lshl_add_u32 v2, v7, 4, v2")
    e(f"s_mul_i32 s11, s3, {G2_PART}")
    e("v_add_u32 v2, s11, v2")
    for lt in range(4):
        for dt in range(4):
            c = ACC + 4*(4*lt+dt)
            e(f"ds_write_b128 v2, v[{c}:{c+3}] offset:{16*dt*G2_RS + 64*lt}")
    e(f"v_mul_u32_u24 v2, {4*G2_RS}, v4")
    e("v_lshl_add_u32 v2, v5, 4, v2")
    e("s_waitcnt lgkmcnt(0)")
    e("s_barrier")
    P = 80
    for w in range(4):
        for dd in range(4):
            r = P + 16*w + 4*dd
            e(f"ds_read_b128 v[{r}:{r+3}], v2 offset:{w*G2_PART + dd*G2_RS}")
    X = 8
    e("s_waitcnt vmcnt(0)")
    for dd in range(4):
        for h in range(2):
            e(f"v_lshlrev_b32 v{X+4*dd+2*h}, 16, v{RES+2*dd+h}")
            e(f"v_and_b32 v{X+4*dd+2*h+1}, 0xffff0000, v{RES+2*dd+h}")
    for w in range(4):
        e(f"s_waitcnt lgkmcnt({12-4*w})")
        for k in range(8):
            e(f"v_pk_add_f32 v[{X+2*k}:{X+2*k+1}], v[{X+2*k}:{X+2*k+1}], v[{P+16*w+2*k}:{P+16*w+2*k+1}]")
    O = 24
    if not final:
        e(f"s_add_u32 s10, s9, {xout}")
        for dd in range(4):
            e(f"v_cvt_pk_bf16_f32 v{O+2*dd}, v{X+4*dd}, v{X+4*dd+1}")
            e(f"v_cvt_pk_bf16_f32 v{O+2*dd+1}, v{X+4*dd+2}, v{X+4*dd+3}")
            e(f"s_add_u32 s11, s10, {4096*dd}")
            e(f"buffer_store_dwordx2 v[{O+2*dd}:{O+2*dd+1}], v6, s[44:47], s11 offen")
        Y = 32
        for dd in range(4):
            for h in range(2):
                e(f"v_lshlrev_b32 v{Y+4*dd+2*h}, 16, v{O+2*dd+h}")
                e(f"v_and_b32 v{Y+4*dd+2*h+1}, 0xffff0000, v{O+2*dd+h}")
        S = 48
        for h in range(2):
            e(f"v_pk_add_f32 v[{S+2*h}:{S+2*h+1}], v[{Y+2*h}:{Y+2*h+1}], v[{Y+4+2*h}:{Y+5+2*h}]")
            e(f"v_pk_mul_f32 v[{S+4+2*h}:{S+5+2*h}], v[{Y+2*h}:{Y+2*h+1}], v[{Y+2*h}:{Y+2*h+1}]")
        for dd in range(2, 4):
            for h in range(2):
                e(f"v_pk_add_f32 v[{S+2*h}:{S+2*h+1}], v[{S+2*h}:{S+2*h+1}], v[{Y+4*dd+2*h}:{Y+4*dd+2*h+1}]")
        for dd in range(1, 4):
            for h in range(2):
                y = Y+4*dd+2*h
                e(f"v_pk_fma_f32 v[{S+4+2*h}:{S+5+2*h}], v[{y}:{y+1}], v[{y}:{y+1}], v[{S+4+2*h}:{S+5+2*h}]")
        for m in ("quad_perm:[1,0,3,2]", "quad_perm:[2,3,0,1]", "row_half_mirror", "row_mirror"):
            for r in range(8):
                e(f"v_add_f32_dpp v{S+r}, v{S+r}, v{S+r} {m} row_mask:0xf bank_mask:0xf")
        for bit, step in ((0, 1), (1, 2), (2, 4)):
            e(f"v_and_b32 v7, {1<<bit}, v4")
            e("v_cmp_ne_u32 vcc, 0, v7")
            for r in range(0, 8, 2*step):
                e(f"v_cndmask_b32 v{S+r}, v{S+r}, v{S+r+step}, vcc")
        e("v_and_b32 v7, 3, v4")
        e("v_lshl_add_u32 v7, v5, 2, v7")
        e("v_lshlrev_b32 v7, 2, v7")
        e("v_bfe_u32 v2, v4, 2, 1")
        e("v_lshl_add_u32 v7, v2, 13, v7")
        e("s_lshl_b32 s11, s4, 8")
        e(f"s_add_u32 s11, s11, {WS_ST2}")
        e("v_cmp_gt_u32 vcc, 8, v4")
        e("s_and_b64 exec, exec, vcc")
        e(f"buffer_atomic_add_f32 v{S}, v7, s[44:47], s11 offen")
    else:
        srd(e, 48, 38, 2048*512*2)
        e("v_lshlrev_b32 v7, 12, v5")
        e("v_lshl_add_u32 v7, v4, 3, v7")
        e("s_lshl_b32 s10, s4, 16")
        e("s_lshl_b32 s11, s5, 7")
        e("s_add_u32 s10, s10, s11")
        for li in range(4):
            e(f"v_cvt_pk_bf16_f32 v{O+2*li}, v{X+li}, v{X+4+li}")
            e(f"v_cvt_pk_bf16_f32 v{O+2*li+1}, v{X+8+li}, v{X+12+li}")
            e(f"buffer_store_dwordx2 v[{O+2*li}:{O+2*li+1}], v7, s[48:51], s10 offen offset:{1024*li}")
    prof_stamp(e, 5)
    prof_end(e, 6, kidx)
    e.label(f"{L}_end")
    e("s_endpgm")
    nv = FR + 32*depth
    return dict(name=name, grid=256, block=256, lds=G2_LDS, vgpr=nv, accum=min(256, nv))
```

```python
from emit import *
from layout import *

NT = 64
NS = 28
NP1 = 64
NP2 = 56
NK = 512
NPRE = NT + NS + NP1 + NP2
PREP_WGS = NPRE + NK
PREP_LDS = 32 * 1056

def load_args(e):
    e("s_load_dwordx16 s[16:31], s[0:1], 0")
    e("s_load_dwordx8 s[32:39], s[0:1], 64")
    e("s_load_dwordx4 s[40:43], s[0:1], 96")

def exp_acc(e, dst, x, t0, t1, sL2E, sL2Elo, sLN2):
    e(f"v_mul_f32 v{t0}, s{sL2E}, v{x}")
    e(f"v_fma_f32 v{t1}, v{x}, s{sL2E}, -v{t0}")
    e(f"v_fma_f32 v{t1}, v{x}, s{sL2Elo}, v{t1}")
    e(f"v_exp_f32 v{dst}, v{t0}")
    e(f"v_mul_f32 v{t1}, s{sLN2}, v{t1}")
    e(f"v_fma_f32 v{dst}, v{dst}, v{t1}, v{dst}")

def gen_prep(e, name="prep_kernel"):
    kbegin(e, name)
    e(f"s_cmp_ge_u32 s2, {PREP_WGS}")
    e(f"s_cbranch_scc1 L_prep_end")
    prof_stamp(e, 0)
    load_args(e)
    e("v_and_b32 v1, 63, v0")
    e("v_lshrrev_b32 v2, 6, v0")
    e("s_nop 0")
    e("v_readfirstlane_b32 s3, v2")
    e("s_waitcnt lgkmcnt(0)")
    srd(e, 44, 42, WS_SIZE)
    e(f"s_cmp_ge_u32 s2, {NPRE}")
    e("s_cbranch_scc1 L_prep_k")
    e(f"s_cmp_ge_u32 s2, {NT+NS+NP1}")
    e("s_cbranch_scc1 L_prep_p2")
    e(f"s_cmp_ge_u32 s2, {NT+NS}")
    e("s_cbranch_scc1 L_prep_p1")
    e(f"s_cmp_ge_u32 s2, {NT}")
    e("s_cbranch_scc1 L_prep_s")
    srd(e, 48, 16, 2048*512*2)
    e("s_lshl_b32 s4, s2, 15")
    e("v_lshrrev_b32 v3, 3, v0")
    e("v_and_b32 v4, 7, v0")
    e("v_lshlrev_b32 v5, 10, v3")
    e("v_lshl_add_u32 v5, v4, 4, v5")
    for j in range(8):
        e(f"buffer_load_dwordx4 v[{8+4*j}:{11+4*j}], v5, s[48:51], s4 offen offset:{128*j}")
    e("v_mul_u32_u24 v6, 1056, v3")
    e("v_lshl_add_u32 v6, v4, 4, v6")
    e("s_mov_b32 s5, 0x3f803f80")
    e("v_mov_b32 v40, 0")
    e("v_mov_b32 v41, 0")
    for j in range(8):
        e(f"s_waitcnt vmcnt({7-j})")
        e(f"ds_write_b128 v6, v[{8+4*j}:{11+4*j}] offset:{128*j}")
        for k in range(4):
            e(f"v_dot2_f32_bf16 v40, v{8+4*j+k}, s5, v40")
            e(f"v_dot2_f32_bf16 v41, v{8+4*j+k}, v{8+4*j+k}, v41")
    for m in ("quad_perm:[1,0,3,2]", "quad_perm:[2,3,0,1]", "row_half_mirror"):
        e(f"v_add_f32_dpp v40, v40, v40 {m} row_mask:0xf bank_mask:0xf")
        e(f"v_add_f32_dpp v41, v41, v41 {m} row_mask:0xf bank_mask:0xf")
    e("s_lshl_b32 s6, s2, 7")
    e("v_lshlrev_b32 v7, 2, v3")
    e("v_mov_b32 v42, 0")
    e(f"s_add_u32 s7, s6, {WS_ST0}")
    e(f"s_add_u32 s8, s6, {WS_ST0+8192}")
    e(f"s_add_u32 s12, s6, {WS_ST2}")
    e(f"s_add_u32 s13, s6, {WS_ST2+8192}")
    e("v_cmp_eq_u32 vcc, 0, v4")
    e("s_and_saveexec_b64 s[10:11], vcc")
    e("buffer_store_dword v40, v7, s[44:47], s7 offen")
    e("buffer_store_dword v41, v7, s[44:47], s8 offen")
    e("buffer_store_dword v42, v7, s[44:47], s12 offen")
    e("buffer_store_dword v42, v7, s[44:47], s13 offen")
    e("s_mov_b64 exec, s[10:11]")
    e("v_lshrrev_b32 v3, 4, v1")
    e("v_bfe_u32 v4, v1, 2, 2")
    e("v_lshl_add_u32 v4, v3, 3, v4")
    e("v_mul_u32_u24 v4, 1056, v4")
    e("v_and_b32 v5, 3, v1")
    e("v_lshl_add_u32 v4, v5, 3, v4")
    e("s_lshl_b32 s9, s3, 8")
    e("v_add_u32 v4, s9, v4")
    e("v_and_b32 v5, 15, v1")
    e("v_lshlrev_b32 v5, 12, v5")
    e("v_lshl_add_u32 v5, v3, 4, v5")
    e("s_lshl_b32 s9, s3, 19")
    e("s_lshl_b32 s10, s2, 6")
    e("s_add_u32 s9, s9, s10")
    e(f"s_add_u32 s9, s9, {WS_XT[0]}")
    e("s_waitcnt lgkmcnt(0)")
    e("s_barrier")
    for it in range(8):
        e(f"ds_read_b64_tr_b16 v[{8+4*it}:{9+4*it}], v4 offset:{32*it}")
        e(f"ds_read_b64_tr_b16 v[{10+4*it}:{11+4*it}], v4 offset:{32*it+4*1056}")
    for it in range(8):
        e(f"s_waitcnt lgkmcnt({14-2*it})")
        e(f"buffer_store_dwordx4 v[{8+4*it}:{11+4*it}], v5, s[44:47], s9 offen")
        e(f"s_add_u32 s9, s9, 65536")
    e("s_branch L_prep_fin" if PROF["on"] else "s_endpgm")
    e.label("L_prep_s")
    srd(e, 48, 32, 512*1792*2)
    srd(e, 52, 34, 1792*2)
    e(f"s_sub_u32 s4, s2, {NT}")
    e("s_lshl_b32 s5, s4, 7")
    e("v_lshrrev_b32 v3, 3, v0")
    e("v_and_b32 v4, 7, v0")
    e(f"v_mul_u32_u24 v5, {16*3584}, v3")
    e("v_lshl_add_u32 v5, v4, 4, v5")
    for k in range(16):
        e(f"buffer_load_dwordx4 v[{8+4*k}:{11+4*k}], v5, s[48:51], s5 offen")
        if k < 15: e(f"s_add_u32 s5, s5, 3584")
    e("v_lshlrev_b32 v6, 1, v0")
    e("s_lshl_b32 s5, s4, 7")
    e("buffer_load_ushort v80, v6, s[52:55], s5 offen")
    for i in range(8):
        e(f"v_mov_b32 v{72+i}, 0")
    for k in range(16):
        e(f"s_waitcnt vmcnt({16-k})")
        for q in range(4):
            r = 8+4*k+q
            e(f"v_lshlrev_b32 v82, 16, v{r}")
            e(f"v_and_b32 v83, 0xffff0000, v{r}")
            e(f"v_pk_add_f32 v[{72+2*q}:{73+2*q}], v[{72+2*q}:{73+2*q}], v[82:83]")
    e("v_lshlrev_b32 v5, 8, v3")
    e("v_lshl_add_u32 v5, v4, 5, v5")
    e("ds_write_b128 v5, v[72:75]")
    e("ds_write_b128 v5, v[76:79] offset:16")
    e("s_waitcnt lgkmcnt(0)")
    e("s_barrier")
    e("s_cmp_lg_u32 s3, 0")
    e("s_cbranch_scc1 L_prep_fin")
    e("v_lshlrev_b32 v5, 2, v0")
    for g in range(32):
        e(f"ds_read_b32 v{8+g}, v5 offset:{256*g}")
    e("s_waitcnt lgkmcnt(0)")
    for g in range(1, 32):
        e(f"v_add_f32 v8, v8, v{8+g}")
    e("s_lshl_b32 s5, s4, 8")
    e(f"s_add_u32 s6, s5, {WS_S1}")
    e(f"s_add_u32 s7, s5, {WS_B1F}")
    e("s_waitcnt vmcnt(0)")
    e("v_lshlrev_b32 v80, 16, v80")
    e("buffer_store_dword v8, v5, s[44:47], s6 offen")
    e("buffer_store_dword v80, v5, s[44:47], s7 offen")
    e("s_branch L_prep_fin" if PROF["on"] else "s_endpgm")
    e.label("L_prep_p1")
    srd(e, 48, 32, 512*1792*2)
    e(f"s_sub_u32 s4, s2, {NT+NS}")
    e("s_lshr_b32 s5, s4, 2")
    e("s_and_b32 s6, s4, 3")
    e("s_lshl_b32 s7, s5, 5")
    e("s_lshl_b32 s8, s3, 3")
    e("s_add_u32 s7, s7, s8")
    e("s_mul_i32 s7, s7, 3584")
    e("s_mul_i32 s9, s6, 896")
    e("s_add_u32 s7, s7, s9")
    e("s_mul_i32 s9, s8, 928")
    e("v_lshlrev_b32 v3, 4, v1")
    e("s_mov_b64 s[10:11], exec")
    e("s_mov_b32 exec_hi, 0x00ffffff")
    for r in range(8):
        e(f"s_add_u32 m0, s9, {928*r}")
        e("buffer_load_dwordx4 v3, s[48:51], s7 offen lds")
        if r < 7: e("s_add_u32 s7, s7, 3584")
    e("s_mov_b64 exec, s[10:11]")
    e("v_lshrrev_b32 v4, 2, v1")
    e("v_mul_u32_u24 v4, 928, v4")
    e("v_and_b32 v5, 3, v1")
    e("v_lshl_add_u32 v4, v5, 3, v4")
    e("s_mul_i32 s9, s3, 224")
    e("v_add_u32 v4, s9, v4")
    e("s_lshl_b32 s9, s6, 2")
    e("s_add_u32 s9, s9, s3")
    e("s_lshl_b32 s9, s9, 4")
    e("s_add_u32 s9, s9, s5")
    e("s_mul_i32 s9, s9, 7168")
    e(f"s_add_u32 s9, s9, {WS_W1P}")
    e("s_add_u32 s12, s9, 4096")
    e("s_waitcnt vmcnt(0)")
    e("s_barrier")
    for a in range(7):
        e(f"ds_read_b64_tr_b16 v[{8+4*a}:{9+4*a}], v4 offset:{32*a}")
        e(f"ds_read_b64_tr_b16 v[{10+4*a}:{11+4*a}], v4 offset:{32*a+16*928}")
    for a in range(7):
        e(f"s_waitcnt lgkmcnt({12-2*a})")
        e(f"buffer_store_dwordx4 v[{8+4*a}:{11+4*a}], v3, s[44:47], s{9 if a < 4 else 12} offen offset:{1024*(a&3)}")
    e("s_branch L_prep_fin" if PROF["on"] else "s_endpgm")
    e.label("L_prep_p2")
    srd(e, 48, 36, 512*1792*2)
    e(f"s_sub_u32 s4, s2, {NT+NS+NP1}")
    e("s_mul_i32 s5, s4, 9363")
    e("s_lshr_b32 s5, s5, 16")
    e("s_mul_i32 s6, s5, 7")
    e("s_sub_u32 s6, s4, s6")
    e("s_mul_i32 s7, s5, 224")
    e("s_lshl_b32 s8, s6, 5")
    e("s_cmp_ge_u32 s6, 3")
    e("s_cselect_b32 s10, 16, 0")
    e("s_add_u32 s8, s8, s10")
    e("s_add_u32 s9, s8, 16")
    e("s_cmp_eq_u32 s6, 6")
    e("s_cselect_b32 s8, 96, s8")
    e("s_cselect_b32 s9, 208, s9")
    e("s_cmp_ge_u32 s3, 2")
    e("s_cselect_b32 s8, s9, s8")
    e("s_and_b32 s10, s3, 1")
    e("s_lshl_b32 s10, s10, 3")
    e("s_add_u32 s8, s8, s10")
    e("s_add_u32 s8, s8, s7")
    e("s_lshl_b32 s8, s8, 10")
    e("s_mul_i32 s9, s3, 8*1056")
    e("v_lshlrev_b32 v3, 4, v1")
    for r in range(8):
        e(f"s_add_u32 m0, s9, {1056*r}")
        e("buffer_load_dwordx4 v3, s[48:51], s8 offen lds")
        if r < 7: e("s_add_u32 s8, s8, 1024")
    e("v_lshrrev_b32 v4, 2, v1")
    e("v_mul_u32_u24 v4, 1056, v4")
    e("v_and_b32 v5, 3, v1")
    e("v_lshl_add_u32 v4, v5, 3, v4")
    e("s_lshl_b32 s9, s3, 8")
    e("v_add_u32 v4, s9, v4")
    e("s_mul_i32 s9, s3, 112")
    e("s_add_u32 s9, s9, s4")
    e("s_lshl_b32 s9, s9, 12")
    e(f"s_add_u32 s9, s9, {WS_W2P}")
    e(f"s_add_u32 s12, s9, {56*4096}")
    e("s_waitcnt vmcnt(0)")
    e("s_barrier")
    for a in range(8):
        e(f"ds_read_b64_tr_b16 v[{8+4*a}:{9+4*a}], v4 offset:{32*a}")
        e(f"ds_read_b64_tr_b16 v[{10+4*a}:{11+4*a}], v4 offset:{32*a+16*1056}")
    for a in range(8):
        e(f"s_waitcnt lgkmcnt({14-2*a})")
        e(f"buffer_store_dwordx4 v[{8+4*a}:{11+4*a}], v3, s[44:47], s{9 if a < 4 else 12} offen offset:{1024*(a&3)}")
    e("s_branch L_prep_fin" if PROF["on"] else "s_endpgm")
    e.label("L_prep_k")
    srd(e, 48, 18, 512*128*2)
    srd(e, 52, 20, 512*128*2)
    srd(e, 56, 22, 512*128*2)
    srd(e, 60, 24, 512*128*2)
    srd(e, 64, 26, 512*2)
    e(f"s_sub_u32 s4, s2, {NPRE}")
    e("s_lshl_b32 s5, s4, 8")
    e("s_lshl_b32 s6, s4, 1")
    e("v_lshlrev_b32 v3, 2, v1")
    e("v_and_b32 v4, 31, v1")
    e("v_lshrrev_b32 v5, 5, v1")
    e("s_lshl_b32 s7, s3, 6")
    e("v_lshl_add_u32 v6, v4, 1, s7")
    e("v_mov_b32 v7, 0")
    e("buffer_load_dword v8, v3, s[56:59], s5 offen")
    e("buffer_load_dword v9, v3, s[60:63], s5 offen")
    e("buffer_load_ushort v10, v6, s[48:51], s5 offen")
    e("buffer_load_ushort v11, v6, s[52:55], s5 offen")
    e("buffer_load_ushort v12, v6, s[56:59], s5 offen")
    e("buffer_load_ushort v13, v6, s[60:63], s5 offen")
    e("buffer_load_ushort v14, v7, s[64:67], s6 offen")
    e(f"s_mov_b32 s8, {L2E:#x}")
    e(f"s_mov_b32 s9, {L2E_LO:#x}")
    e(f"s_mov_b32 s10, {LN2:#x}")
    e("v_mov_b32 v16, v4")
    e("v_lshl_add_u32 v18, v4, 1, 0")
    e("v_add_u32 v18, 240, v18")
    e("v_cmp_lt_u32 vcc, 7, v4")
    e("v_cndmask_b32 v16, v16, v18, vcc")
    e("v_bfe_u32 v18, v4, 1, 1")
    e("v_lshlrev_b32 v18, 8, v18")
    e("v_and_b32 v19, 1, v4")
    e("v_lshl_add_u32 v18, v19, 2, v18")
    e("v_add_u32 v18, 512, v18")
    e("v_cmp_lt_u32 vcc, 11, v4")
    e("v_cndmask_b32 v16, v16, v18, vcc")
    e("v_lshlrev_b32 v18, 8, v4")
    e("v_subrev_u32 v18, 3072, v18")
    e("v_cmp_lt_u32 vcc, 15, v4")
    e("v_cndmask_b32 v16, v16, v18, vcc")
    e("v_cmp_lt_u32 vcc, 20, v4")
    e("v_cndmask_b32 v16, v16, v7, vcc")
    e("v_cvt_f32_u32 v16, v16")
    e("v_lshlrev_b32 v17, 3, v4")
    e("v_cvt_f32_u32 v17, v17")
    e("s_waitcnt vmcnt(5)")
    e("v_and_b32 v8, 0x7fff7fff, v8")
    e("v_and_b32 v9, 0x7fff7fff, v9")
    e("v_pk_max_u16 v8, v8, v9")
    e("v_and_b32 v9, 0xffff, v8")
    e("v_lshrrev_b32 v8, 16, v8")
    e("v_max_u32 v8, v8, v9")
    for m in ("row_shr:1", "row_shr:2", "row_shr:4", "row_shr:8"):
        e(f"v_max_u32_dpp v8, v8, v8 {m} row_mask:0xf bank_mask:0xf")
    e("v_max_u32_dpp v8, v8, v8 row_bcast:15 row_mask:0xa bank_mask:0xf")
    e("v_max_u32_dpp v8, v8, v8 row_bcast:31 row_mask:0xc bank_mask:0xf")
    e("v_readlane_b32 s11, v8, 63")
    e("s_lshr_b32 s11, s11, 7")
    e("s_max_u32 s11, s11, 1")
    e("s_min_u32 s11, s11, 253")
    e("s_sub_u32 s12, 254, s11")
    e("s_lshl_b32 s12, s12, 23")
    e("s_add_u32 s11, s11, 1")
    e("s_lshl_b32 s11, s11, 23")
    e("s_waitcnt vmcnt(0)")
    for r in (10, 11, 12, 13, 14):
        e(f"v_lshlrev_b32 v{r}, 16, v{r}")
    exp_acc(e, 20, 10, 18, 19, 8, 9, 10)
    exp_acc(e, 21, 14, 18, 19, 8, 9, 10)
    e("v_cvt_pk_bf16_f32 v20, v20, v21")
    e("v_and_b32 v21, 0xffff0000, v20")
    e("v_lshlrev_b32 v20, 16, v20")
    e("v_mul_f32 v24, v20, v21")
    e("v_mul_f32 v24, s8, v24")
    e("v_sub_f32 v24, 0, v24")
    e("v_mul_f32 v25, v11, v21")
    e("v_mul_f32 v25, 0.15915494, v25")
    e("v_mul_f32 v26, s12, v12")
    e("v_mul_f32 v27, s12, v13")
    e("v_mul_f32 v15, s11, v21")
    e("s_lshl_b32 s13, s3, 9")
    e("v_lshl_add_u32 v18, v4, 4, s13")
    e("ds_write_b128 v18, v[24:27]")
    e("v_lshl_add_u32 v18, v5, 6, s13")
    for i in range(16):
        e(f"v_mov_b32 v{100+i}, 0")
    e("s_mov_b32 s14, 0")
    e("s_waitcnt lgkmcnt(0)")
    e.label("L_prep_kloop")
    P = [28, 32, 36, 40]
    for m in range(4):
        e(f"ds_read_b128 v[{P[m]}:{P[m]+3}], v18 offset:{16*m}")
    e("v_add_u32 v18, 128, v18")
    def T(m, xy): return 44 + 6*(2*m+xy)
    e("s_waitcnt lgkmcnt(0)")
    for m in range(4):
        for xy in range(2):
            t = T(m, xy)
            e(f"v_pk_mul_f32 v[{t}:{t+1}], v[{P[m]}:{P[m]+1}], v[16:17] op_sel:[0,{xy}] op_sel_hi:[1,{xy}]")
    for m in range(4):
        for xy in range(2):
            t = T(m, xy)
            e(f"v_fract_f32 v{t+1}, v{t+1}")
            e(f"v_exp_f32 v{t+4}, v{t}")
    for m in range(4):
        for xy in range(2):
            t = T(m, xy)
            e(f"v_cos_f32 v{t+2}, v{t+1}")
            e(f"v_sin_f32 v{t+3}, v{t+1}")
    for m in range(4):
        t = T(m, 0)
        e(f"v_pk_mul_f32 v[{t}:{t+1}], v[{t+2}:{t+3}], v[{P[m]+2}:{P[m]+3}] op_sel:[0,0] op_sel_hi:[1,0] neg_hi:[0,1]")
        e(f"v_pk_fma_f32 v[{t+2}:{t+3}], v[{t+2}:{t+3}], v[{P[m]+2}:{P[m]+3}], v[{t}:{t+1}] op_sel:[1,1,0] op_sel_hi:[0,1,1] neg_lo:[0,1,0] neg_hi:[0,1,0]")
    for m in range(4):
        for xy in range(2):
            t = T(m, xy)
            e(f"v_pk_mul_f32 v[{t+2}:{t+3}], v[{t+2}:{t+3}], v[{t+4}:{t+5}] op_sel:[0,0] op_sel_hi:[1,0]")
    for m in range(4):
        for xy in range(2):
            t = T(m, xy)
            e(f"v_cvt_pk_f16_f32 v{92+4*xy+m}, v{t+2}, v{t+3}")
    e("v_mfma_f32_32x32x16_f16 v[100:115], v[92:95], v[96:99], v[100:115]")
    e("s_add_u32 s14, s14, 1")
    e("s_cmp_lt_u32 s14, 4")
    e("s_cbranch_scc1 L_prep_kloop")
    e("s_mul_i32 s13, s3, 3072")
    e("s_add_u32 s13, s13, 2048")
    e("v_lshlrev_b32 v20, 5, v4")
    e("v_lshl_add_u32 v20, v5, 4, v20")
    e("v_add_u32 v20, s13, v20")
    e("v_lshlrev_b32 v21, 4, v4")
    e(f"v_add_u32 v21, {256*4}, v21")
    e("v_lshlrev_b32 v22, 3, v4")
    e(f"v_add_u32 v22, {384*4}, v22")
    e("v_cmp_eq_u32 vcc, 1, v5")
    e("v_cndmask_b32 v23, v21, v22, vcc")
    e("v_add_u32 v21, 8, v21")
    e(f"v_add_u32 v22, {64*4}, v22")
    e("v_cndmask_b32 v24, v21, v22, vcc")
    e("v_add_u32 v23, s13, v23")
    e("v_add_u32 v24, s13, v24")
    e("v_lshlrev_b32 v25, 2, v4")
    e("v_lshl_add_u32 v25, v5, 9, v25")
    e("v_add_u32 v25, s13, v25")
    e("ds_write_b128 v20, v[100:103]")
    e("ds_write_b64 v23, v[104:105]")
    e("ds_write_b64 v24, v[106:107]")
    for j in range(4):
        e(f"ds_write_b32 v25, v{108+j} offset:{512*4+128*j}")
    e("v_lshlrev_b32 v26, 3, v0")
    for k in range(9):
        e(f"v_add_u32 v{28+k}, {k-1}, v26")
    e("v_max_i32 v28, 0, v28")
    for k in range(9):
        e(f"v_cvt_f32_u32 v{40+k}, v{28+k}")
    e("v_cmp_gt_u32 vcc, 32, v0")
    for k in range(0, 9, 2):
        k2 = min(k+1, 8)
        e(f"v_cvt_pk_bf16_f32 v50, v{40+k}, v{40+k2}")
        e(f"v_and_b32 v{40+k}, 0xffff, v50")
        if k2 != k: e(f"v_lshrrev_b32 v{40+k2}, 16, v50")
    for k in range(9):
        e(f"v_subrev_u32 v{40+k}, {0x4300-128}, v{40+k}")
        e(f"v_cndmask_b32 v{40+k}, v{40+k}, v{28+k}, vcc")
        e(f"v_lshlrev_b32 v{40+k}, 2, v{40+k}")
    e("s_waitcnt lgkmcnt(0)")
    e("s_barrier")
    for k in range(9):
        for w in range(4):
            e(f"ds_read_b32 v{52+4*k+w}, v{40+k} offset:{2048+3072*w}")
    for k in range(9):
        if k == 0: e("s_waitcnt lgkmcnt(15)")
        if k == 5: e("s_waitcnt lgkmcnt(0)")
        if k < 5 and k > 0: pass
        b = 52+4*k
        if k == 0:
            pass
        e(f"v_add_f32 v{b}, v{b}, v{b+1}")
        e(f"v_add_f32 v{b+2}, v{b+2}, v{b+3}")
        e(f"v_add_f32 v{b}, v{b}, v{b+2}")
        e(f"v_mul_f32 v{28+k}, v{b}, v15")
    e("v_cmp_eq_u32 vcc, 0, v0")
    e("v_cndmask_b32 v28, v28, v7, vcc")
    for i in range(4):
        e(f"v_cvt_pk_bf16_f32 v{40+i}, v{29+2*i}, v{30+2*i}")
        e(f"v_cvt_pk_bf16_f32 v{44+i}, v{28+2*i}, v{29+2*i}")
    e(f"s_mul_i32 s5, s4, {KB_CH}")
    e(f"s_add_u32 s5, s5, {WS_KB}")
    e(f"s_add_u32 s6, s5, {KB_COPY}")
    e("v_lshlrev_b32 v26, 4, v0")
    e("buffer_store_dwordx4 v[40:43], v26, s[44:47], s5 offen offset:16")
    e("buffer_store_dwordx4 v[44:47], v26, s[44:47], s6 offen offset:16")
    for i in range(4):
        e(f"v_mov_b32 v{48+i}, 0")
    e("s_and_saveexec_b64 s[10:11], vcc")
    e("s_cbranch_execz L_prep_fin")
    e("buffer_store_dwordx4 v[48:51], v26, s[44:47], s5 offen")
    e("buffer_store_dwordx4 v[48:51], v26, s[44:47], s6 offen")
    e.label("L_prep_fin")
    prof_end(e, 1, 0)
    e.label("L_prep_end")
    e("s_endpgm")
    return dict(name=name, grid=PREP_WGS, block=256, lds=PREP_LDS, vgpr=116)
```

```python
import sys
from top import *
from prep import *
from conv import *
from gemm1 import *
from gemm2 import *
def gen_dummy(e):
    kbegin(e, "dummy_kernel")
    e("s_endpgm")
    return dict(name="dummy_kernel", grid=256, block=256, lds=0, vgpr=8)
gens = [gen_prep,
       lambda e: gen_conv(e, "conv1_kernel", WS_XT[0], WS_XT[1], WS_ST0),
       lambda e: gen_gemm1(e, "gemm1a_kernel", WS_XT[1]),
       lambda e: gen_gemm2(e, "gemm2a_kernel", WS_XT[1], WS_XT[2], False, depth=5),
       lambda e: gen_conv(e, "conv2_kernel", WS_XT[2], WS_XT[3], WS_ST2),
       lambda e: gen_gemm1(e, "gemm1b_kernel", WS_XT[3]),
       lambda e: gen_gemm2(e, "gemm2b_kernel", WS_XT[3], 0, True, depth=5), gen_dummy]
base = ["prep_kernel", "conv1_kernel", "gemm1a_kernel", "gemm2a_kernel", "conv2_kernel", "gemm1b_kernel", "gemm2b_kernel"]
build(gens, base + ["dummy_kernel"]*10, "v_dummy_end.s")
build(gens, ["dummy_kernel"]*10 + base, "v_dummy_start.s")
build(gens, ["dummy_kernel"]*1 + base, "v_dummy_start1.s")
```

```python
import re

TRANS = ("v_exp_f32", "v_log_f32", "v_rcp_f32", "v_rsq_f32", "v_sqrt_f32", "v_sin_f32", "v_cos_f32",
         "v_rcp_iflag_f32", "v_exp_f16", "v_log_f16", "v_rcp_f16", "v_rsq_f16", "v_sqrt_f16")
RMW = ("v_fmac_f32", "v_dot2c_f32_bf16", "v_dot2c_f32_f16", "v_pk_fmac_f16", "v_fmac_f16", "v_fmac_f64")

_reg_re = re.compile(r"(?<![\w.])([vas])\[(\d+):(\d+)\]|(?<![\w.])([vas])(\d+)(?![\w])|(?<![\w])(vcc|exec|m0)(?:_lo|_hi)?(?![\w])")

def regs_of(op):
    out = set()
    for m in _reg_re.finditer(op):
        if m.group(1):
            for i in range(int(m.group(2)), int(m.group(3)) + 1):
                out.add((m.group(1), i))
        elif m.group(4):
            out.add((m.group(4), int(m.group(5))))
        else:
            out.add(("x", m.group(6)))
    return out

def split_ops(s):
    ops, depth, cur = [], 0, ""
    for ch in s:
        if ch in "[(":
            depth += 1
        if ch in "])":
            depth -= 1
        if ch == "," and depth == 0:
            ops.append(cur.strip()); cur = ""
        else:
            cur += ch
    if cur.strip():
        ops.append(cur.strip())
    return ops

class Ins:
    def __init__(self, text):
        self.text = text
        t = text.split(";")[0].strip()
        parts = t.split(None, 1)
        self.op = parts[0]
        op = self.op
        if op.endswith("_e32") or op.endswith("_e64") or op.endswith("_dpp"):
            op = op[:-4]
        self.base = op
        rest = parts[1] if len(parts) > 1 else ""
        ops = split_ops(rest)
        self.mods = ""
        if ops:
            sp = ops[-1].split(None, 1)
            if len(sp) > 1 and not ops[-1].startswith("-") :
                ops[-1] = sp[0]; self.mods = sp[1]
            elif len(sp) > 1:
                ops[-1] = sp[0]; self.mods = sp[1]
        self.ops = ops
        self.w = set(); self.r = set()
        self.kind = "other"
        self.srcA = self.srcB = self.srcC = set()
        self.states = 1
        R = [regs_of(o) for o in ops]
        if op.startswith("v_mfma"):
            self.kind = "mfma"
            self.w = R[0]; self.srcA = R[1]; self.srcB = R[2]; self.srcC = R[3]
            self.r = R[1] | R[2] | R[3]
            if "32x32x16" in op or "32x32x8" in op or "16x16x4_f32" in op: self.passes = 8
            elif "16x16x32" in op or "16x16x16" in op: self.passes = 4
            elif "32x32x2_f32" in op: self.passes = 16
            else: raise ValueError("unknown mfma " + op)
            self.xdl = not op.endswith("_f32") or "bf16" in op or "f16" in op
            if op.endswith("x2_f32") or op.endswith("x4_f32"): self.xdl = False
        elif op.startswith("v_"):
            self.kind = "valu"
            nd = 1
            if op.startswith("v_add_co") or op.startswith("v_sub_co") or op.startswith("v_addc_co") or op.startswith("v_subb_co") or op.startswith("v_subrev_co") or op.startswith("v_div_scale") or op.startswith("v_mad_u64"):
                nd = 2
            if op == "v_nop":
                nd = 0
            for i in range(nd):
                self.w |= R[i]
            for i in range(nd, len(R)):
                self.r |= R[i]
            if op in RMW: self.r |= R[0]
            if op.startswith("v_permlane") and "swap" in op:
                self.w = R[0] | R[1]; self.r = R[0] | R[1]
            if op.startswith("v_cmpx"):
                self.w.add(("x", "exec"))
            if op.startswith("v_writelane"):
                self.r |= R[0]
            if op.startswith("v_cndmask") and len(ops) == 3:
                self.r.add(("x", "vcc"))
            self.trans = op in TRANS
            self.dpp = any(k in self.mods for k in ("row_", "quad_perm", "wave_", "row_bcast", "row_mirror", "row_half"))
            if self.dpp and "bound_ctrl" not in self.mods:
                self.r |= R[0]
            self.opsel_dst = False
        elif op.startswith("buffer_") or op.startswith("global_") or op.startswith("flat_"):
            self.kind = "vmem"
            is_lds = bool(re.search(r"\blds\b", self.mods)) or "load_lds" in op
            if "load" in op and not is_lds:
                self.w = R[0]
                for x in R[1:]: self.r |= x
            elif "atomic" in op and re.search(r"\bsc0\b", self.mods):
                if op.startswith("buffer_"):
                    self.w = R[0]
                    for x in R: self.r |= x
                else:
                    self.w = R[0]
                    for x in R[1:]: self.r |= x
            else:
                for x in R: self.r |= x
            if is_lds: self.r.add(("x", "m0"))
            self.is_lds = is_lds
            self.wide_store = ("store" in op) and ("x4" in op or "x3" in op)
            if self.wide_store:
                self.store_data = R[0] if op.startswith("buffer_") else R[1]
        elif op.startswith("ds_"):
            self.kind = "ds"
            if op.startswith("ds_read") or op.startswith("ds_bpermute") or op.startswith("ds_permute") or op.startswith("ds_swizzle") or "_rtn" in op:
                self.w = R[0]
                for x in R[1:]: self.r |= x
            else:
                for x in R: self.r |= x
        elif op.startswith("s_"):
            self.kind = "salu"
            if op == "s_nop":
                self.states = int(ops[0], 0) + 1
            elif op.startswith("s_cmp") or op.startswith("s_cbranch") or op in ("s_waitcnt", "s_barrier", "s_branch", "s_endpgm", "s_setprio", "s_sleep", "s_bitcmp0_b32", "s_bitcmp1_b32"):
                for x in R: self.r |= x
            else:
                if R:
                    self.w = R[0]
                    for x in R[1:]: self.r |= x
                if "saveexec" in op:
                    self.w.add(("x", "exec"))
            if op.startswith("s_load") or op.startswith("s_buffer_load") or op.startswith("s_memtime") or op.startswith("s_memrealtime"):
                self.kind = "smem"

def isv(regs):
    return {r for r in regs if r[0] in "va"}
def iss(regs):
    return {r for r in regs if r[0] == "s" or r == ("x", "vcc")}

def required(p, c):
    need = 0
    if p.kind == "valu":
        pv = isv(p.w); ps = iss(p.w)
        if c.kind == "mfma" and pv & c.r: need = max(need, 2)
        if c.kind == "valu":
            if p.trans and not c.trans and pv & (c.r | c.w): need = max(need, 1)
            if p.trans and c.trans and pv & c.r: need = max(need, 1)
            if c.base.startswith("v_readfirstlane") or c.base.startswith("v_readlane"):
                if pv & c.r: need = max(need, 1)
                if c.base.startswith("v_readlane") and ps & c.r: need = max(need, 4)
            if c.base.startswith("v_writelane") and ps & c.r: need = max(need, 4)
            if c.dpp and pv & c.r: need = max(need, 2)
            if c.base.startswith("v_permlane") and pv & c.r: need = max(need, 2)
            if ps & c.r: need = max(need, 2)
            if c.base.startswith("v_div_fmas") and ("x", "vcc") in p.w: need = max(need, 4)
            if ("x", "exec") in p.w:
                if c.dpp: need = max(need, 5)
                if c.base.startswith("v_read") or c.base.startswith("v_writelane") or c.base.startswith("v_permlane"): need = max(need, 4)
            if "op_sel" in p.mods and not p.base.startswith("v_pk_") and pv & (c.r | c.w): need = max(need, 1)
            if "dst_sel" in p.mods and pv & (c.r | c.w): need = max(need, 1)
            if p.base.startswith("v_dot") :
                if pv & (c.r | c.w):
                    same = c.base == p.base
                    if same and not (pv & (regs_of(c.ops[1]) | regs_of(c.ops[2]))):
                        pass
                    else:
                        need = max(need, 3)
        if p.base.startswith("v_dot") and c.kind in ("vmem", "ds", "mfma") and pv & c.r: need = max(need, 3)
        if c.kind == "mfma" and ("x", "exec") in p.w: need = max(need, 4)
        if c.kind == "vmem" and ps & c.r: need = max(need, 5)
        if c.kind in ("salu", "smem") and ps & c.r: need = max(need, 1)
    if p.kind == "mfma":
        n = p.passes
        tab_ab = {2: 5, 4: 8, 8: 12, 16: 20} if p.xdl else {2: 4, 4: 6, 8: 10, 16: 18}
        tab_c = {2: 4, 4: 6, 8: 10, 16: 18} if p.xdl else {2: 2, 4: 4, 8: 8, 16: 16}
        if c.kind == "mfma":
            if p.w & (c.srcA | c.srcB): need = max(need, tab_ab[n])
            if p.w & c.srcC:
                if not (p.w == c.srcC and p.passes == c.passes and p.xdl == c.xdl): need = max(need, tab_c[n])
                elif n == 2: need = max(need, 2)
            elif p.w & c.w: need = max(need, tab_c[n])
        elif c.kind in ("valu", "vmem", "ds"):
            if p.w & (c.r | c.w): need = max(need, tab_ab[n])
            if c.kind == "valu" and p.xdl and p.srcC & c.w: need = max(need, {2: 1, 4: 3, 8: 7, 16: 15}[n])
    if p.kind == "salu":
        if ("x", "m0") in p.w and ((c.kind == "vmem" and c.is_lds) or c.base.startswith("s_movrel") or "addtid" in c.base or c.base.startswith("s_sendmsg")):
            need = max(need, 1)
    if p.kind == "vmem" and getattr(p, "wide_store", False):
        if p.store_data & c.w:
            need = max(need, 2 if c.kind == "valu" else 1)
    return need

class E:
    def __init__(self):
        self.lines = []
        self.hist = []
        self.labels = {}
        self.ins = []
        self.nops = 0
        self.fwd = {}
    def raw(self, text):
        self.lines.append(text)
    def comment(self, text):
        self.lines.append("    ; " + text)
    def _push(self, ins):
        for h in self.hist:
            h[1] += ins.states
        self.hist = [h for h in self.hist if h[1] < 24]
        self.hist.append([ins, 0])
        self.ins.append(ins)
        self.lines.append("    " + ins.text)
    def _nop(self, n):
        while n > 0:
            k = min(n, 16)
            self._push(Ins(f"s_nop {k-1}"))
            self.nops += 1
            n -= k
    def __call__(self, text):
        for line in text.strip().split("\n"):
            line = line.strip()
            if not line or line.startswith(";"):
                if line: self.lines.append("    " + line)
                continue
            if line.endswith(":"):
                self.label(line[:-1]); continue
            if line.startswith("."):
                self.lines.append(line); continue
            ins = Ins(line)
            need = 0
            for p, el in self.hist:
                need = max(need, required(p, ins) - el)
            if need > 0:
                self._nop(need)
            if ins.base.startswith("s_cbranch") or ins.base == "s_branch":
                tgt = ins.ops[0]
                if tgt in self.labels:
                    idx = self.labels[tgt]
                    extra = 0
                    acc = 1
                    for c in self.ins[idx: idx + 24]:
                        for p, el in self.hist:
                            extra = max(extra, required(p, c) - el - acc)
                        acc += c.states
                        if acc > 24: break
                    if extra > 0:
                        self._nop(extra)
                else:
                    self.fwd.setdefault(tgt, []).append([[p, el + 1] for p, el in self.hist])
            self._push(ins)
    def label(self, name):
        for snap in self.fwd.pop(name, []):
            self.hist += [[p, el] for p, el in snap]
        self.labels[name] = len(self.ins)
        self.lines.append(name + ":")
    def reset_hist(self):
        self.hist = []
    def drain(self, n=20):
        self._nop(n)
    def text(self):
        return "\n".join(self.lines) + "\n"

def srd(e, d, base, nbytes):
    e(f"s_mov_b32 s{d}, s{base}")
    e(f"s_and_b32 s{d+1}, s{base+1}, 0xffff")
    e(f"s_mov_b32 s{d+2}, {nbytes}")
    e(f"s_mov_b32 s{d+3}, 0x20000")

def srd_off(e, d, base, off, nbytes):
    e(f"s_add_u32 s{d}, s{base}, {off}")
    e(f"s_addc_u32 s{d+1}, s{base+1}, 0")
    e(f"s_and_b32 s{d+1}, s{d+1}, 0xffff")
    e(f"s_mov_b32 s{d+2}, {nbytes}")
    e(f"s_mov_b32 s{d+3}, 0x20000")

def kd(name, vgpr, sgpr=96, accum=None):
    if accum is None:
        accum = (min(vgpr, 256) + 3) // 4 * 4
    return f""".p2align 6
.amdhsa_kernel {name}
  .amdhsa_next_free_vgpr {vgpr}
  .amdhsa_next_free_sgpr {sgpr}
  .amdhsa_accum_offset {accum}
  .amdhsa_group_segment_fixed_size 0
  .amdhsa_kernarg_size 112
  .amdhsa_user_sgpr_count 2
  .amdhsa_user_sgpr_kernarg_segment_ptr 1
  .amdhsa_system_sgpr_workgroup_id_x 1
.end_amdhsa_kernel
"""
def kbegin(e, name):
    e.reset_hist()
    e.raw(f".globl {name}\n.p2align 8\n.type {name},@function")
    e.label(name)

PROF = {"on": False, "k": 0}
WS_PROF = 0x1C00000
def prof_stamp(e, i, mt=True):
    if PROF["on"]:
        e(f"s_memrealtime s[{76+2*i}:{77+2*i}]")
        if mt: e(f"s_memtime s[{52+2*i}:{53+2*i}]")
def prof_end(e, n, kidx, mt=True):
    if not PROF["on"]:
        return
    e("s_mov_b64 exec, -1")
    e("s_waitcnt vmcnt(0)")
    prof_stamp(e, n, mt)
    e("s_waitcnt lgkmcnt(0)")
    e("s_lshl_b32 s74, s2, 2")
    e("s_add_u32 s74, s74, s3")
    e("s_lshl_b32 s74, s74, 6")
    e(f"s_add_u32 s74, s74, {WS_PROF + kidx*1024*256}")
    e("v_mov_b32 v0, 0")
    for i in range(n+1):
        e(f"v_mov_b32 v{1+i}, s{76+2*i}")
        if mt: e(f"v_mov_b32 v{9+i}, s{52+2*i}")
    e("s_mov_b64 exec, 1")
    for i in range(n+1):
        e(f"buffer_store_dword v{1+i}, v0, s[44:47], s74 offen offset:{4*i}")
        if mt: e(f"buffer_store_dword v{9+i}, v0, s[44:47], s74 offen offset:{32+4*i}")
```

```python
XBS = 32768 + 128
WS_XT = [0x000000, 0x202000, 0x404000, 0x606000]
WS_ST0 = 0x810000
WS_ST2 = 0x814000
WS_S1 = 0x818000
WS_B1F = 0x81A000
WS_KB = 0x900000
KB_COPY = 4112
KB_CH = 2 * KB_COPY
WS_W1P = 0x1000000
WS_WEXT = 0x820000
WS_W2P = 0x1200000
WS_ACT = 0x1400000
WS_SIZE = 0x2000000
L2E = 0x3fb8aa3b
L2E_LO = 0x32a57060
LN2 = 0x3f317218
```

```python
from emit import *
from layout import *

KC_STRIDE = 4160
KC_BASE = 0
U_BASE = 8 * KC_STRIDE
U_CH = 4608
Z_BASE = U_BASE + 2 * U_CH
Z_CH = 8192
CONV_LDS = Z_BASE + 2 * Z_CH

def shells():
    out = []
    for n in range(8):
        sh = []
        for o in range(n):
            if n + o <= 7:
                sh.append((n, o)); sh.append((o, n))
        if 2 * n <= 7:
            sh.append((n, n))
        out.append(sh)
    return out

def gen_conv(e, name, xin, xout, st, kidx=1):
    kbegin(e, name)
    L = f"L_{name}"
    e("s_cmp_ge_u32 s2, 256")
    e(f"s_cbranch_scc1 {L}_end")
    prof_stamp(e, 0)
    e("s_load_dwordx2 s[42:43], s[0:1], 104")
    e("s_load_dwordx2 s[28:29], s[0:1], 48")
    e("v_and_b32 v1, 63, v0")
    e("v_lshrrev_b32 v2, 6, v0")
    e("v_lshlrev_b32 v6, 5, v0")
    e("v_readfirstlane_b32 s3, v2")
    e("v_lshlrev_b32 v7, 4, v0")
    e("v_lshlrev_b32 v8, 4, v1")
    e("s_lshr_b32 s4, s3, 1")
    e("s_and_b32 s5, s3, 1")
    e("s_lshl_b32 s6, s2, 7")
    e(f"s_add_u32 s7, s6, {xin}")
    e("v_lshrrev_b32 v9, 2, v0")
    e(f"v_mul_u32_u24 v9, {XBS}, v9")
    e("v_and_b32 v34, 3, v0")
    e("v_lshl_add_u32 v9, v34, 4, v9")
    e("s_lshl_b32 s9, s2, 1")
    e("s_add_u32 s9, s9, s4")
    e(f"s_mul_i32 s10, s9, {KB_CH}")
    e("s_lshl_b32 s11, s5, 2")
    e("s_sub_u32 s10, s10, s11")
    e(f"s_add_u32 s10, s10, {WS_KB+16}")
    e(f"s_add_u32 s11, s10, {KB_COPY}")
    e(f"s_mul_i32 s12, s3, {2*KC_STRIDE}")
    e(f"s_add_u32 s12, s12, {KC_BASE+32}")
    e("s_lshl_b32 s13, s2, 2")
    e(f"s_mov_b32 s14, {st}")
    e(f"s_mov_b32 s15, {st+8192}")
    e("s_waitcnt lgkmcnt(0)")
    e("s_load_dword s30, s[28:29], s13")
    srd(e, 44, 42, WS_SIZE)
    e("buffer_load_dwordx4 v[10:13], v6, s[44:47], s14 offen")
    e("buffer_load_dwordx4 v[14:17], v6, s[44:47], s14 offen offset:16")
    e("buffer_load_dwordx4 v[18:21], v6, s[44:47], s15 offen")
    e("buffer_load_dwordx4 v[22:25], v6, s[44:47], s15 offen offset:16")
    e("buffer_load_dwordx4 v[26:29], v9, s[44:47], s7 offen")
    e("buffer_load_dwordx4 v[30:33], v9, s[44:47], s7 offen offset:64")
    e("s_mov_b32 m0, s12")
    for j in range(4):
        e(f"buffer_load_dwordx4 v8, s[44:47], s10 offen offset:{1024*j} lds")
    e(f"s_add_u32 m0, s12, {KC_STRIDE}")
    for j in range(4):
        e(f"buffer_load_dwordx4 v8, s[44:47], s11 offen offset:{1024*j} lds")
    for i in range(4):
        e(f"v_mov_b32 v{36+i}, 0")
    e("v_lshrrev_b32 v9, 5, v1")
    e(f"v_mul_u32_u24 v9, {U_CH}, v9")
    e("v_and_b32 v34, 31, v1")
    e("v_lshl_add_u32 v9, v34, 4, v9")
    e(f"ds_write_b128 v9, v[36:39] offset:{U_BASE}")
    e("v_bfe_u32 v9, v1, 1, 3")
    e(f"v_mul_u32_u24 v9, {KC_STRIDE}, v9")
    e("v_and_b32 v34, 1, v1")
    e("v_lshl_add_u32 v9, v34, 4, v9")
    e(f"ds_write_b128 v9, v[36:39] offset:{KC_BASE}")
    e("v_lshrrev_b32 v34, 4, v1")
    e("v_and_b32 v35, 15, v1")
    e("v_bfe_u32 v2, v1, 2, 2")
    e(f"v_mul_u32_u24 v2, {KC_STRIDE}, v2")
    e("v_lshl_add_u32 v2, v34, 4, v2")
    e("v_and_b32 v9, 3, v1")
    e("v_lshl_add_u32 v2, v9, 3, v2")
    e(f"s_mul_i32 s16, s4, {4*KC_STRIDE}")
    e("s_lshl_b32 s17, s5, 8")
    e("s_add_u32 s16, s16, s17")
    e(f"s_add_u32 s16, s16, {KC_BASE+8}")
    e("v_add_u32 v2, s16, v2")
    e("v_lshlrev_b32 v3, 5, v35")
    e("v_lshlrev_b32 v9, 4, v34")
    e("v_sub_u32 v3, v3, v9")
    e(f"s_mul_i32 s16, s4, {U_CH}")
    e("s_sub_u32 s16, s16, s17")
    e(f"s_add_u32 s16, s16, {U_BASE+528-192}")
    e("v_add_u32 v3, s16, v3")
    e("v_lshl_add_u32 v4, v35, 6, v9")
    e(f"s_lshl_b32 s16, s4, 13")
    e(f"s_add_u32 s16, s16, {Z_BASE}")
    e("v_add_u32 v4, s16, v4")
    e("v_lshrrev_b32 v5, 1, v35")
    e(f"v_mul_u32_u24 v5, {XBS}, v5")
    e("v_lshl_add_u32 v5, v34, 3, v5")
    e("v_and_b32 v35, 1, v35")
    e("v_lshl_add_u32 v5, v35, 5, v5")
    e("s_lshl_b32 s18, s9, 6")
    e(f"s_add_u32 s18, s18, {xout}")
    e("s_mov_b32 s20, 0x3b000000")
    e("s_mov_b32 s21, 0x3b000000")
    e("s_mov_b32 s22, 0x3727c5ac")
    e("s_waitcnt vmcnt(10)")
    prof_stamp(e, 1)
    for p in range(4):
        e(f"v_pk_mul_f32 v[{10+2*p}:{11+2*p}], v[{10+2*p}:{11+2*p}], s[20:21]")
        e(f"v_pk_mul_f32 v[{18+2*p}:{19+2*p}], v[{18+2*p}:{19+2*p}], s[20:21]")
    for p in range(4):
        e(f"v_pk_fma_f32 v[{18+2*p}:{19+2*p}], v[{10+2*p}:{11+2*p}], v[{10+2*p}:{11+2*p}], v[{18+2*p}:{19+2*p}] neg_lo:[1,0,0] neg_hi:[1,0,0]")
    for r in range(8):
        e(f"v_max_f32 v{18+r}, 0, v{18+r}")
        e(f"v_add_f32 v{18+r}, s22, v{18+r}")
    for r in range(8):
        e(f"v_rsq_f32 v{18+r}, v{18+r}")
    for p in range(4):
        e(f"v_pk_mul_f32 v[{10+2*p}:{11+2*p}], v[{10+2*p}:{11+2*p}], v[{18+2*p}:{19+2*p}] neg_lo:[1,0] neg_hi:[1,0]")
    e("s_waitcnt lgkmcnt(0)")
    e("s_lshl_b32 s24, s30, 16")
    e("s_mov_b32 s25, s24")
    e("s_and_b32 s26, s30, 0xffff0000")
    e("s_mov_b32 s27, s26")
    for ch in range(2):
        e(f"s_waitcnt vmcnt({9-ch})")
        X = 40 + 16*ch
        for p in range(4):
            src = 26 + 4*ch + p
            e(f"v_lshlrev_b32 v{X+2*p}, 16, v{src}")
            e(f"v_and_b32 v{X+2*p+1}, 0xffff0000, v{src}")
        for p in range(4):
            e(f"v_pk_fma_f32 v[{X+8+2*p}:{X+9+2*p}], v[{X+2*p}:{X+1+2*p}], v[{18+2*p}:{19+2*p}], v[{10+2*p}:{11+2*p}]")
        for p in range(4):
            e(f"v_cvt_pk_bf16_f32 v{26+4*ch+p}, v{X+8+2*p}, v{X+9+2*p}")
        e(f"ds_write_b128 v7, v[{26+4*ch}:{29+4*ch}] offset:{U_BASE+512+ch*U_CH}")
        for p in range(4):
            e(f"v_pk_fma_f32 v[{X+2*p}:{X+1+2*p}], v[{X+8+2*p}:{X+9+2*p}], s[{24+2*ch}:{25+2*ch}], v[{X+2*p}:{X+1+2*p}]")
        e(f"ds_write_b128 v6, v[{X}:{X+3}] offset:{Z_BASE+ch*Z_CH}")
        e(f"ds_write_b128 v6, v[{X+4}:{X+7}] offset:{Z_BASE+ch*Z_CH+16}")
    ACC = 192
    prof_stamp(e, 2)
    e("s_waitcnt vmcnt(0) lgkmcnt(0)")
    e("s_barrier")
    prof_stamp(e, 3)
    if PROF["on"]: e("s_waitcnt lgkmcnt(0)")
    e("s_cmp_eq_u32 s5, 0")
    e(f"s_cbranch_scc1 {L}_i0")
    for I in range(4):
        e(f"ds_read_b128 v[{ACC+4*I}:{ACC+4*I+3}], v4 offset:{1024*I}")
    for r in range(16, 32):
        e(f"v_mov_b32 v{ACC+r}, 0")
    e(f"s_branch {L}_i1")
    e.label(f"{L}_i0")
    for I in range(4, 8):
        e(f"ds_read_b128 v[{ACC+4*I}:{ACC+4*I+3}], v4 offset:{1024*I}")
    for r in range(16):
        e(f"v_mov_b32 v{ACC+r}, 0")
    e.label(f"{L}_i1")
    def A(st_, n): return 64 + 64*st_ + 4*n
    def B(st_, n): return 96 + 64*st_ + 4*n
    def loads(rr):
        st_ = rr & 1
        ops = []
        for n in range(8):
            a = A(st_, n); b = B(st_, n)
            ops.append(f"ds_read_b64_tr_b16 v[{a}:{a+1}], v2 offset:{8+512*n+64*rr}")
            ops.append(f"ds_read_b64_tr_b16 v[{a+2}:{a+3}], v2 offset:{512*n+64*rr}")
            ops.append(f"ds_read_b128 v[{b}:{b+3}], v3 offset:{512*n+64*(3-rr)}")
        return ops
    sh = shells()
    first = loads(0)
    issued = 0
    for rr in range(4):
        st_ = rr & 1
        nxt = loads(rr+1) if rr < 3 else []
        if rr == 0:
            q = list(first)
            for _ in range(12):
                e(q.pop(0))
            iss = 12
            pend = q + nxt
            total_issued = 12
            k = 0
            for n in range(8):
                need = 3*(n+1)
                while total_issued < need:
                    e(pend.pop(0)); total_issued += 1
                e(f"s_waitcnt lgkmcnt({min(15, total_issued-need)})")
                for (ta, sb) in sh[n]:
                    I = ta + sb
                    e(f"v_mfma_f32_16x16x32_bf16 v[{ACC+4*I}:{ACC+4*I+3}], v[{A(st_,ta)}:{A(st_,ta)+3}], v[{B(st_,sb)}:{B(st_,sb)+3}], v[{ACC+4*I}:{ACC+4*I+3}]")
                    if pend and total_issued - need < 14:
                        e(pend.pop(0)); total_issued += 1
            while pend:
                e(pend.pop(0))
        else:
            e("s_waitcnt lgkmcnt(0)")
            pend = list(nxt)
            k = 0
            for n in range(8):
                for (ta, sb) in sh[n]:
                    I = ta + sb
                    e(f"v_mfma_f32_16x16x32_bf16 v[{ACC+4*I}:{ACC+4*I+3}], v[{A(st_,ta)}:{A(st_,ta)+3}], v[{B(st_,sb)}:{B(st_,sb)+3}], v[{ACC+4*I}:{ACC+4*I+3}]")
                    if pend:
                        e(pend.pop(0))
    prof_stamp(e, 4)
    e("s_cmp_eq_u32 s5, 0")
    e(f"s_cbranch_scc1 {L}_e0")
    for hs in (1, 0):
        send = range(4) if hs == 1 else range(4, 8)
        keep = range(4, 8) if hs == 1 else range(4)
        if hs == 0:
            e.label(f"{L}_e0")
        for I in send:
            e(f"ds_write_b128 v4, v[{ACC+4*I}:{ACC+4*I+3}] offset:{1024*I}")
        e("s_waitcnt lgkmcnt(0)")
        e("s_barrier")
        for j, I in enumerate(keep):
            e(f"ds_read_b128 v[{64+4*j}:{67+4*j}], v4 offset:{1024*I}")
        for j, I in enumerate(keep):
            e(f"s_waitcnt lgkmcnt({3-j})")
            a = ACC + 4*I
            e(f"v_pk_add_f32 v[{a}:{a+1}], v[{a}:{a+1}], v[{64+4*j}:{65+4*j}]")
            e(f"v_pk_add_f32 v[{a+2}:{a+3}], v[{a+2}:{a+3}], v[{66+4*j}:{67+4*j}]")
            e(f"v_cvt_pk_bf16_f32 v{a}, v{a}, v{a+1}")
            e(f"v_cvt_pk_bf16_f32 v{a+1}, v{a+2}, v{a+3}")
            e(f"s_add_u32 s19, s18, {8*XBS*I}")
            e(f"buffer_store_dwordx2 v[{a}:{a+1}], v5, s[44:47], s19 offen")
        prof_end(e, 5, kidx)
        e("s_endpgm")
    e.label(f"{L}_end")
    e("s_endpgm")
    return dict(name=name, grid=256, block=256, lds=CONV_LDS, vgpr=224)
```

```python
import re

TRANS = ("v_exp_f32", "v_log_f32", "v_rcp_f32", "v_rsq_f32", "v_sqrt_f32", "v_sin_f32", "v_cos_f32",
         "v_rcp_iflag_f32", "v_exp_f16", "v_log_f16", "v_rcp_f16", "v_rsq_f16", "v_sqrt_f16")
RMW = ("v_fmac_f32", "v_dot2c_f32_bf16", "v_dot2c_f32_f16", "v_pk_fmac_f16", "v_fmac_f16", "v_fmac_f64")

_reg_re = re.compile(r"(?<![\w.])([vas])\[(\d+):(\d+)\]|(?<![\w.])([vas])(\d+)(?![\w])|(?<![\w])(vcc|exec|m0)(?:_lo|_hi)?(?![\w])")

def regs_of(op):
    out = set()
    for m in _reg_re.finditer(op):
        if m.group(1):
            for i in range(int(m.group(2)), int(m.group(3)) + 1):
                out.add((m.group(1), i))
        elif m.group(4):
            out.add((m.group(4), int(m.group(5))))
        else:
            out.add(("x", m.group(6)))
    return out

def split_ops(s):
    ops, depth, cur = [], 0, ""
    for ch in s:
        if ch in "[(":
            depth += 1
        if ch in "])":
            depth -= 1
        if ch == "," and depth == 0:
            ops.append(cur.strip()); cur = ""
        else:
            cur += ch
    if cur.strip():
        ops.append(cur.strip())
    return ops

class Ins:
    def __init__(self, text):
        self.text = text
        t = text.split(";")[0].strip()
        parts = t.split(None, 1)
        self.op = parts[0]
        op = self.op
        if op.endswith("_e32") or op.endswith("_e64") or op.endswith("_dpp"):
            op = op[:-4]
        self.base = op
        rest = parts[1] if len(parts) > 1 else ""
        ops = split_ops(rest)
        self.mods = ""
        if ops:
            sp = ops[-1].split(None, 1)
            if len(sp) > 1 and not ops[-1].startswith("-") :
                ops[-1] = sp[0]; self.mods = sp[1]
            elif len(sp) > 1:
                ops[-1] = sp[0]; self.mods = sp[1]
        self.ops = ops
        self.w = set(); self.r = set()
        self.kind = "other"
        self.srcA = self.srcB = self.srcC = set()
        self.states = 1
        R = [regs_of(o) for o in ops]
        if op.startswith("v_mfma"):
            self.kind = "mfma"
            self.w = R[0]; self.srcA = R[1]; self.srcB = R[2]; self.srcC = R[3]
            self.r = R[1] | R[2] | R[3]
            if "32x32x16" in op or "32x32x8" in op or "16x16x4_f32" in op: self.passes = 8
            elif "16x16x32" in op or "16x16x16" in op: self.passes = 4
            elif "32x32x2_f32" in op: self.passes = 16
            else: raise ValueError("unknown mfma " + op)
            self.xdl = not op.endswith("_f32") or "bf16" in op or "f16" in op
            if op.endswith("x2_f32") or op.endswith("x4_f32"): self.xdl = False
        elif op.startswith("v_"):
            self.kind = "valu"
            nd = 1
            if op.startswith("v_add_co") or op.startswith("v_sub_co") or op.startswith("v_addc_co") or op.startswith("v_subb_co") or op.startswith("v_subrev_co") or op.startswith("v_div_scale") or op.startswith("v_mad_u64"):
                nd = 2
            if op == "v_nop":
                nd = 0
            for i in range(nd):
                self.w |= R[i]
            for i in range(nd, len(R)):
                self.r |= R[i]
            if op in RMW: self.r |= R[0]
            if op.startswith("v_permlane") and "swap" in op:
                self.w = R[0] | R[1]; self.r = R[0] | R[1]
            if op.startswith("v_cmpx"):
                self.w.add(("x", "exec"))
            if op.startswith("v_writelane"):
                self.r |= R[0]
            if op.startswith("v_cndmask") and len(ops) == 3:
                self.r.add(("x", "vcc"))
            self.trans = op in TRANS
            self.dpp = any(k in self.mods for k in ("row_", "quad_perm", "wave_", "row_bcast", "row_mirror", "row_half"))
            if self.dpp and "bound_ctrl" not in self.mods:
                self.r |= R[0]
            self.opsel_dst = False
        elif op.startswith("buffer_") or op.startswith("global_") or op.startswith("flat_"):
            self.kind = "vmem"
            is_lds = bool(re.search(r"\blds\b", self.mods)) or "load_lds" in op
            if "load" in op and not is_lds:
                self.w = R[0]
                for x in R[1:]: self.r |= x
            elif "atomic" in op and re.search(r"\bsc0\b", self.mods):
                if op.startswith("buffer_"):
                    self.w = R[0]
                    for x in R: self.r |= x
                else:
                    self.w = R[0]
                    for x in R[1:]: self.r |= x
            else:
                for x in R: self.r |= x
            if is_lds: self.r.add(("x", "m0"))
            self.is_lds = is_lds
            self.wide_store = ("store" in op) and ("x4" in op or "x3" in op)
            if self.wide_store:
                self.store_data = R[0] if op.startswith("buffer_") else R[1]
        elif op.startswith("ds_"):
            self.kind = "ds"
            if op.startswith("ds_read") or op.startswith("ds_bpermute") or op.startswith("ds_permute") or op.startswith("ds_swizzle") or "_rtn" in op:
                self.w = R[0]
                for x in R[1:]: self.r |= x
            else:
                for x in R: self.r |= x
        elif op.startswith("s_"):
            self.kind = "salu"
            if op == "s_nop":
                self.states = int(ops[0], 0) + 1
            elif op.startswith("s_cmp") or op.startswith("s_cbranch") or op in ("s_waitcnt", "s_barrier", "s_branch", "s_endpgm", "s_setprio", "s_sleep", "s_bitcmp0_b32", "s_bitcmp1_b32"):
                for x in R: self.r |= x
            else:
                if R:
                    self.w = R[0]
                    for x in R[1:]: self.r |= x
                if "saveexec" in op:
                    self.w.add(("x", "exec"))
            if op.startswith("s_load") or op.startswith("s_buffer_load") or op.startswith("s_memtime") or op.startswith("s_memrealtime"):
                self.kind = "smem"

def isv(regs):
    return {r for r in regs if r[0] in "va"}
def iss(regs):
    return {r for r in regs if r[0] == "s" or r == ("x", "vcc")}

def required(p, c):
    need = 0
    if p.kind == "valu":
        pv = isv(p.w); ps = iss(p.w)
        if c.kind == "mfma" and pv & c.r: need = max(need, 2)
        if c.kind == "valu":
            if p.trans and not c.trans and pv & (c.r | c.w): need = max(need, 1)
            if p.trans and c.trans and pv & c.r: need = max(need, 1)
            if c.base.startswith("v_readfirstlane") or c.base.startswith("v_readlane"):
                if pv & c.r: need = max(need, 1)
                if c.base.startswith("v_readlane") and ps & c.r: need = max(need, 4)
            if c.base.startswith("v_writelane") and ps & c.r: need = max(need, 4)
            if c.dpp and pv & c.r: need = max(need, 2)
            if c.base.startswith("v_permlane") and pv & c.r: need = max(need, 2)
            if ps & c.r: need = max(need, 2)
            if c.base.startswith("v_div_fmas") and ("x", "vcc") in p.w: need = max(need, 4)
            if ("x", "exec") in p.w:
                if c.dpp: need = max(need, 5)
                if c.base.startswith("v_read") or c.base.startswith("v_writelane") or c.base.startswith("v_permlane"): need = max(need, 4)
            if "op_sel" in p.mods and not p.base.startswith("v_pk_") and pv & (c.r | c.w): need = max(need, 1)
            if "dst_sel" in p.mods and pv & (c.r | c.w): need = max(need, 1)
            if p.base.startswith("v_dot") :
                if pv & (c.r | c.w):
                    same = c.base == p.base
                    if same and not (pv & (regs_of(c.ops[1]) | regs_of(c.ops[2]))):
                        pass
                    else:
                        need = max(need, 3)
        if p.base.startswith("v_dot") and c.kind in ("vmem", "ds", "mfma") and pv & c.r: need = max(need, 3)
        if c.kind == "mfma" and ("x", "exec") in p.w: need = max(need, 4)
        if c.kind == "vmem" and ps & c.r: need = max(need, 5)
        if c.kind in ("salu", "smem") and ps & c.r: need = max(need, 1)
    if p.kind == "mfma":
        n = p.passes
        tab_ab = {2: 5, 4: 8, 8: 12, 16: 20} if p.xdl else {2: 4, 4: 6, 8: 10, 16: 18}
        tab_c = {2: 4, 4: 6, 8: 10, 16: 18} if p.xdl else {2: 2, 4: 4, 8: 8, 16: 16}
        if c.kind == "mfma":
            if p.w & (c.srcA | c.srcB): need = max(need, tab_ab[n])
            if p.w & c.srcC:
                if not (p.w == c.srcC and p.passes == c.passes and p.xdl == c.xdl): need = max(need, tab_c[n])
                elif n == 2: need = max(need, 2)
            elif p.w & c.w: need = max(need, tab_c[n])
        elif c.kind in ("valu", "vmem", "ds"):
            if p.w & (c.r | c.w): need = max(need, tab_ab[n])
            if c.kind == "valu" and p.xdl and p.srcC & c.w: need = max(need, {2: 1, 4: 3, 8: 7, 16: 15}[n])
    if p.kind == "salu":
        if ("x", "m0") in p.w and ((c.kind == "vmem" and c.is_lds) or c.base.startswith("s_movrel") or "addtid" in c.base or c.base.startswith("s_sendmsg")):
            need = max(need, 1)
    if p.kind == "vmem" and getattr(p, "wide_store", False):
        if p.store_data & c.w:
            need = max(need, 2 if c.kind == "valu" else 1)
    return need

class E:
    def __init__(self):
        self.lines = []
        self.hist = []
        self.labels = {}
        self.ins = []
        self.nops = 0
        self.fwd = {}
    def raw(self, text):
        self.lines.append(text)
    def comment(self, text):
        self.lines.append("    ; " + text)
    def _push(self, ins):
        for h in self.hist:
            h[1] += ins.states
        self.hist = [h for h in self.hist if h[1] < 24]
        self.hist.append([ins, 0])
        self.ins.append(ins)
        self.lines.append("    " + ins.text)
    def _nop(self, n):
        while n > 0:
            k = min(n, 16)
            self._push(Ins(f"s_nop {k-1}"))
            self.nops += 1
            n -= k
    def __call__(self, text):
        for line in text.strip().split("\n"):
            line = line.strip()
            if not line or line.startswith(";"):
                if line: self.lines.append("    " + line)
                continue
            if line.endswith(":"):
                self.label(line[:-1]); continue
            if line.startswith("."):
                self.lines.append(line); continue
            ins = Ins(line)
            need = 0
            for p, el in self.hist:
                need = max(need, required(p, ins) - el)
            if need > 0:
                self._nop(need)
            if ins.base.startswith("s_cbranch") or ins.base == "s_branch":
                tgt = ins.ops[0]
                if tgt in self.labels:
                    idx = self.labels[tgt]
                    extra = 0
                    acc = 1
                    for c in self.ins[idx: idx + 24]:
                        for p, el in self.hist:
                            extra = max(extra, required(p, c) - el - acc)
                        acc += c.states
                        if acc > 24: break
                    if extra > 0:
                        self._nop(extra)
                else:
                    self.fwd.setdefault(tgt, []).append([[p, el + 1] for p, el in self.hist])
            self._push(ins)
    def label(self, name):
        for snap in self.fwd.pop(name, []):
            self.hist += [[p, el] for p, el in snap]
        self.labels[name] = len(self.ins)
        self.lines.append(name + ":")
    def reset_hist(self):
        self.hist = []
    def drain(self, n=20):
        self._nop(n)
    def text(self):
        return "\n".join(self.lines) + "\n"

def srd(e, d, base, nbytes):
    e(f"s_mov_b32 s{d}, s{base}")
    e(f"s_and_b32 s{d+1}, s{base+1}, 0xffff")
    e(f"s_mov_b32 s{d+2}, {nbytes}")
    e(f"s_mov_b32 s{d+3}, 0x20000")

def srd_off(e, d, base, off, nbytes):
    e(f"s_add_u32 s{d}, s{base}, {off}")
    e(f"s_addc_u32 s{d+1}, s{base+1}, 0")
    e(f"s_and_b32 s{d+1}, s{d+1}, 0xffff")
    e(f"s_mov_b32 s{d+2}, {nbytes}")
    e(f"s_mov_b32 s{d+3}, 0x20000")

def kd(name, vgpr, sgpr=96, accum=None):
    if accum is None:
        accum = (min(vgpr, 256) + 3) // 4 * 4
    return f""".p2align 6
.amdhsa_kernel {name}
  .amdhsa_next_free_vgpr {vgpr}
  .amdhsa_next_free_sgpr {sgpr}
  .amdhsa_accum_offset {accum}
  .amdhsa_group_segment_fixed_size 0
  .amdhsa_kernarg_size 112
  .amdhsa_user_sgpr_count 2
  .amdhsa_user_sgpr_kernarg_segment_ptr 1
  .amdhsa_system_sgpr_workgroup_id_x 1
.end_amdhsa_kernel
"""
def kbegin(e, name):
    e.reset_hist()
    e.raw(f".globl {name}\n.p2align 8\n.type {name},@function")
    e.label(name)

PROF = {"on": False, "k": 0}
WS_PROF = 0x1C00000
def prof_stamp(e, i, mt=True):
    if PROF["on"]:
        e(f"s_memrealtime s[{76+2*i}:{77+2*i}]")
        if mt: e(f"s_memtime s[{52+2*i}:{53+2*i}]")
def prof_end(e, n, kidx, mt=True):
    if not PROF["on"]:
        return
    e("s_mov_b64 exec, -1")
    e("s_waitcnt vmcnt(0)")
    prof_stamp(e, n, mt)
    e("s_waitcnt lgkmcnt(0)")
    e("s_lshl_b32 s74, s2, 3")
    e("s_add_u32 s74, s74, s3")
    e("s_lshl_b32 s74, s74, 6")
    e(f"s_add_u32 s74, s74, {WS_PROF + kidx*1024*512}")
    e("v_mov_b32 v0, 0")
    for i in range(n+1):
        e(f"v_mov_b32 v{1+i}, s{76+2*i}")
        if mt: e(f"v_mov_b32 v{9+i}, s{52+2*i}")
    e("s_mov_b64 exec, 1")
    for i in range(n+1):
        e(f"buffer_store_dword v{1+i}, v0, s[44:47], s74 offen offset:{4*i}")
        if mt: e(f"buffer_store_dword v{9+i}, v0, s[44:47], s74 offen offset:{32+4*i}")
```

```python
from emit import *
from layout import *

G1_STAT = 65536
G1_FLAG = G1_STAT + 512
G1_LDS = 65536 + 512 + 64

def gen_gemm1(e, name, xin, kidx=2, D=6, NA=2, st_mod=" sc1", prio=(0, 0, 3), plain=(0, 0)):
    kbegin(e, name)
    L = f"L_{name}"
    e("s_cmp_ge_u32 s2, 256")
    e(f"s_cbranch_scc1 {L}_end")
    prof_stamp(e, 0)
    e("s_load_dwordx2 s[42:43], s[0:1], 104")
    e("v_and_b32 v1, 63, v0")
    e("v_lshrrev_b32 v2, 6, v0")
    e("v_lshlrev_b32 v3, 4, v1")
    e("v_readfirstlane_b32 s3, v2")
    e("s_and_b32 s4, s2, 3")
    e("s_lshl_b32 s4, s4, 3")
    e("s_bfe_u32 s6, s2, 0x30003")
    e("s_add_u32 s4, s4, s6")
    e("s_and_b32 s5, s2, 4")
    e("s_lshr_b32 s6, s2, 6")
    e("s_add_u32 s5, s5, s6")
    e("v_lshrrev_b32 v5, 3, v1")
    e("v_and_b32 v5, 2, v5")
    e("v_xor_b32 v4, v5, v1")
    e("v_lshlrev_b32 v4, 4, v4")
    e("s_lshr_b32 s10, s3, 2")
    e("s_and_b32 s11, s3, 3")
    e("s_lshl_b32 s11, s11, 10")
    e("s_lshl_b32 s7, s4, 1")
    e("s_add_u32 s7, s7, s10")
    e(f"s_mul_i32 s7, s7, {XBS}")
    e("s_add_u32 s7, s7, s11")
    e(f"s_add_u32 s7, s7, {xin}")
    e("s_lshl_b32 s10, s10, 15")
    e("s_add_u32 s8, s10, s11")
    e("s_mov_b32 m0, s8")
    e("s_mul_i32 s9, s5, 7")
    e("s_add_u32 s9, s9, s3")
    e("s_lshl_b32 s13, s9, 7")
    e("s_lshl_b32 s14, s9, 10")
    e("s_lshl_b32 s9, s9, 15")
    e(f"s_add_u32 s9, s9, {WS_W1P}")
    e("s_waitcnt lgkmcnt(0)")
    srd(e, 44, 42, WS_SIZE)
    ops = []
    def Xp(p):
        if p > 0:
            e("s_add_u32 s7, s7, 4096")
            e(f"s_add_u32 m0, s8, {4096*p}")
        e("buffer_load_dwordx4 v4, s[44:47], s7 offen lds")
        ops.append(("X", 0 if p < NA else 1))
    for p in range(NA): Xp(p)
    ACC, XF, CS, ST, TM = 16, 48, 80, 96, 104
    def xf(ks, j): return XF + 16*(ks & 1) + 4*j
    def reads(ks):
        out = []
        for j in range(4):
            b = xf(ks, j)
            o = 2048*ks + 32768*(j >> 1)
            out.append(f"ds_read_b64_tr_b16 v[{b}:{b+1}], v{7+(j&1)} offset:{o}")
            out.append(f"ds_read_b64_tr_b16 v[{b+2}:{b+3}], v{7+(j&1)} offset:{o+1024}")
        return out
    def mf(c, a, b, first):
        cs = "0" if first else f"v[{c}:{c+3}]"
        return f"v_mfma_f32_16x16x32_bf16 v[{c}:{c+3}], {a}, {b}, {cs}"
    def addr():
        e("v_lshrrev_b32 v5, 4, v1")
        e("v_lshrrev_b32 v7, 2, v1")
        e("v_lshlrev_b32 v7, 6, v7")
        e("v_and_b32 v8, 3, v1")
        e("v_lshl_add_u32 v7, v8, 3, v7")
        e("v_and_b32 v8, 1, v5")
        e("v_lshl_add_u32 v7, v8, 5, v7")
        e("v_xor_b32 v8, 32, v7")
        e("v_and_b32 v10, 15, v1")
        e("v_lshlrev_b32 v10, 3, v10")
        e(f"v_add_u32 v10, {G1_STAT}, v10")
        e(f"v_mov_b32 v11, {G1_FLAG}")
    def wait_for(tag):
        last = max(i for i, t in enumerate(ops) if t == tag)
        return f"s_waitcnt vmcnt({len(ops)-1-last})"
    e("s_cmp_eq_u32 s3, 7")
    e(f"s_cbranch_scc1 {L}_stat")
    ops0 = list(ops)
    def Wl(ks):
        def f(t):
            def g():
                e(f"buffer_load_dwordx4 a[{8*ks+4*t}:{8*ks+4*t+3}], v3, s[44:47], s9 offen offset:{2048*(ks&1)+1024*t}")
                ops.append(("W", ks))
                if t == 1 and (ks & 1): e("s_add_u32 s9, s9, 4096")
            return g
        return [f(0), f(1)]
    def Cl():
        def f(i):
            def g():
                e(f"buffer_load_dwordx4 v[{CS+4*i}:{CS+4*i+3}], v9, s[44:47], s{15+(i>>1)} offen offset:{64*(i&1)}")
                ops.append(("C", 0))
            return g
        return [f(i) for i in range(4)]
    for ks in range(2):
        for g in Wl(ks): g()
    for p in range(NA, 8): Xp(p)
    addr()
    e("v_lshlrev_b32 v9, 4, v5")
    e(f"s_add_u32 s15, s13, {WS_SL}")
    e(f"s_add_u32 s16, s13, {WS_BL}")
    e(f"s_mul_i32 s17, s4, {4*57344}")
    e("s_add_u32 s17, s17, s14")
    e(f"s_add_u32 s17, s17, {WS_ACT}")
    for j in range(1, 4):
        e(f"s_add_u32 s{17+j}, s17, {57344*j}")
    if prio[0] or prio[1]:
        e("s_cmp_ge_u32 s3, 4")
        e(f"s_setprio {prio[0]}")
        e(f"s_cbranch_scc0 {L}_p0")
        e(f"s_setprio {prio[1]}")
        e.label(f"{L}_p0")
    prof_stamp(e, 1)
    e(wait_for(("X", 0)))
    e("s_barrier")
    prof_stamp(e, 2)
    if PROF["on"]: e("s_waitcnt lgkmcnt(0)")
    for r in reads(0): e(r)
    pendW = []
    for ks in range(2, 16): pendW += Wl(ks)
    pendW += Cl()
    nW = 2
    def acc(t, j): return ACC + 16*t + 4*j
    issued = 4
    for ks in range(16):
        fill = []
        if ks + 1 == 2*NA:
            e(wait_for(("X", 1)))
            e("s_barrier")
        if ks < 15: fill += reads(ks+1)
        target = 2*(ks + D + 1)
        e(wait_for(("W", ks)) + " lgkmcnt(0)")
        if ks == 8: prof_stamp(e, 3)
        ms = [mf(acc(t, j), f"a[{8*ks+4*t}:{8*ks+4*t+3}]", f"v[{xf(ks,j)}:{xf(ks,j)+3}]", ks == 0) for t in range(2) for j in range(4)]
        for i, m in enumerate(ms):
            e(m)
            for _ in range(2):
                if fill: e(fill.pop(0))
            if i >= 2 and pendW and issued < target:
                pendW.pop(0)(); issued += 1
        if ks == 8 and PROF["on"]: e("s_waitcnt lgkmcnt(0)")
    assert not pendW
    prof_stamp(e, 4)
    if PROF["on"]: e("s_waitcnt lgkmcnt(0)")
    e("s_setprio 0")
    e.label(f"{L}_poll")
    e("ds_read_b32 v12, v11")
    for j in range(4):
        e(f"ds_read_b64 v[{ST+2*j}:{ST+2*j+1}], v10 offset:{128*j}")
    e("s_waitcnt lgkmcnt(0)")
    e("v_readfirstlane_b32 s21, v12")
    e("s_cmp_eq_u32 s21, 0")
    e(f"s_cbranch_scc1 {L}_poll")
    e(wait_for(("C", 0)))
    def epi(pk):
        for j in range(4):
            TT = TM if (j & 1) == 0 else XF
            UU = TT + 8
            OO = TT + 16
            st = f"v[{ST+2*j}:{ST+2*j+1}]"
            P = [(acc(t, j) + 2*h, 4*t + 2*h, CS + 4*t + 2*h) for t in range(2) for h in range(2)]
            Q = [(acc(t, j) + h, 4*t + h, CS + 4*t + h) for t in range(2) for h in range(4)]
            if pk:
                for c, i, s_ in P:
                    e(f"v_pk_fma_f32 v[{TT+i}:{TT+i+1}], v[{s_}:{s_+1}], {st}, v[{s_+8}:{s_+9}] op_sel:[0,1,0] op_sel_hi:[1,1,1] neg_lo:[0,1,0] neg_hi:[0,1,0]")
                for c, i, s_ in P:
                    e(f"v_pk_fma_f32 v[{c}:{c+1}], v[{c}:{c+1}], {st}, v[{TT+i}:{TT+i+1}] op_sel:[0,0,0] op_sel_hi:[1,0,1]")
            else:
                for c, i, s_ in Q:
                    e(f"v_fma_f32 v{TT+i}, v{s_}, -v{ST+2*j+1}, v{s_+8}")
                for c, i, s_ in Q:
                    e(f"v_fma_f32 v{c}, v{c}, v{ST+2*j}, v{TT+i}")
            for c, i, s_ in Q:
                e(f"v_exp_f32 v{TT+i}, v{c}")
            if pk:
                for c, i, s_ in P:
                    e(f"v_pk_fma_f32 v[{UU+i}:{UU+i+1}], v[{TT+i}:{TT+i+1}], 0.5, 1.0 op_sel_hi:[1,0,0]")
                for c, i, s_ in P:
                    e(f"v_pk_fma_f32 v[{TT+i}:{TT+i+1}], v[{TT+i}:{TT+i+1}], v[{UU+i}:{UU+i+1}], 1.0 op_sel_hi:[1,1,0]")
            else:
                for c, i, s_ in Q:
                    e(f"v_fma_f32 v{UU+i}, v{TT+i}, 0.5, 1.0")
                for c, i, s_ in Q:
                    e(f"v_fma_f32 v{TT+i}, v{TT+i}, v{UU+i}, 1.0")
            for i in range(8):
                e(f"v_rcp_f32 v{TT+i}, v{TT+i}")
            if pk:
                for c, i, s_ in P:
                    e(f"v_pk_fma_f32 v[{TT+i}:{TT+i+1}], v[{TT+i}:{TT+i+1}], v[{c}:{c+1}], v[{c}:{c+1}] neg_lo:[1,0,0] neg_hi:[1,0,0]")
            else:
                for c, i, s_ in Q:
                    e(f"v_fma_f32 v{TT+i}, -v{TT+i}, v{c}, v{c}")
            for k in range(4):
                e(f"v_cvt_pk_bf16_f32 v{OO+k}, v{TT+2*k}, v{TT+2*k+1}")
            e(f"buffer_store_dwordx4 v[{OO}:{OO+3}], v3, s[44:47], s{17+j} offen{st_mod}")
        prof_stamp(e, 5)
        prof_end(e, 6, kidx)
        e("s_endpgm")
    if plain[0] != plain[1]:
        e("s_cmp_ge_u32 s3, 4")
        e(f"s_cbranch_scc1 {L}_e1")
        epi(not plain[0])
        e.label(f"{L}_e1")
        epi(not plain[1])
    else:
        epi(not plain[0])
    e.label(f"{L}_stat")
    ops[:] = ops0
    for p in range(NA, 8): Xp(p)
    if prio[2]: e(f"s_setprio {prio[2]}")
    addr()
    ONE = CS
    for r in range(4):
        e(f"v_mov_b32 v{ONE+r}, 0x3f803f80")
    e("v_mov_b32 v12, 0")
    e("ds_write_b32 v11, v12")
    e("v_mov_b32 v12, 1")
    prof_stamp(e, 1)
    e(wait_for(("X", 0)) + " lgkmcnt(0)")
    e("s_barrier")
    prof_stamp(e, 2)
    if PROF["on"]: e("s_waitcnt lgkmcnt(0)")
    for r in reads(0): e(r)
    for ks in range(16):
        fill = []
        if ks + 1 == 2*NA:
            e(wait_for(("X", 1)))
            e("s_barrier")
        if ks < 15: fill += reads(ks+1)
        e("s_waitcnt lgkmcnt(0)")
        if ks == 8: prof_stamp(e, 3)
        ms = []
        for j in range(4):
            b = f"v[{xf(ks,j)}:{xf(ks,j)+3}]"
            ms.append(mf(ACC+4*j, f"v[{ONE}:{ONE+3}]", b, ks == 0))
            ms.append(mf(ACC+16+4*j, b, b, ks == 0))
        for i, m in enumerate(ms):
            e(m)
            for _ in range(2):
                if fill: e(fill.pop(0))
        if ks == 8 and PROF["on"]: e("s_waitcnt lgkmcnt(0)")
    prof_stamp(e, 4)
    e("v_and_b32 v13, 1, v1")
    e("v_cmp_ne_u32 vcc, 0, v13")
    e("v_and_b32 v13, 2, v1")
    e("v_cmp_ne_u32 s[20:21], 0, v13")
    e("v_bfe_u32 v13, v1, 2, 2")
    e("v_cmp_eq_u32 s[22:23], v13, v5")
    e("s_mov_b32 s17, 0x3b000000")
    e("s_mov_b32 s18, 0x3727c5ac")
    e(f"s_mov_b32 s19, {L2E:#x}")
    for j in range(4):
        g = ACC+16+4*j
        e(f"v_cndmask_b32 v{g}, v{g}, v{g+1}, vcc")
        e(f"v_cndmask_b32 v{g+2}, v{g+2}, v{g+3}, vcc")
    for j in range(4):
        g = ACC+16+4*j
        e(f"v_cndmask_b32 v{g}, v{g}, v{g+2}, s[20:21]")
    for j in range(4):
        e(f"v_mul_f32 v{ACC+4*j}, s17, v{ACC+4*j}")
        e(f"v_mul_f32 v{ACC+16+4*j}, s17, v{ACC+16+4*j}")
    for j in range(4):
        e(f"v_fma_f32 v{ACC+16+4*j}, -v{ACC+4*j}, v{ACC+4*j}, v{ACC+16+4*j}")
    for j in range(4):
        e(f"v_max_f32 v{ACC+16+4*j}, 0, v{ACC+16+4*j}")
    for j in range(4):
        e(f"v_add_f32 v{ACC+16+4*j}, s18, v{ACC+16+4*j}")
    for j in range(4):
        e(f"v_rsq_f32 v{ACC+16+4*j}, v{ACC+16+4*j}")
    for j in range(4):
        e(f"v_mul_f32 v{ACC+4*j+1}, v{ACC+4*j}, v{ACC+16+4*j}")
        e(f"v_mul_f32 v{ACC+4*j}, s19, v{ACC+16+4*j}")
    e("s_mov_b64 exec, s[22:23]")
    for j in range(4):
        e(f"ds_write_b64 v10, v[{ACC+4*j}:{ACC+4*j+1}] offset:{128*j}")
    e("s_waitcnt lgkmcnt(0)")
    e("ds_write_b32 v11, v12")
    prof_stamp(e, 5)
    prof_end(e, 6, kidx)
    e.label(f"{L}_end")
    e("s_endpgm")
    return dict(name=name, grid=256, block=512, lds=G1_LDS, vgpr=256, accum=128)
```

```python
from emit import *
from layout import *

def gen_gemm2(e, name, xres, xout, final, NS=8, I=4, PDK=3, kidx=3, st_mod="", touch=None, rate=1):
    RESB = NS * 16384
    OUTB = RESB + 8192
    LDS = OUTB + 4 * 2304
    kbegin(e, name)
    L = f"L_{name}"
    e("s_cmp_ge_u32 s2, 256")
    e(f"s_cbranch_scc1 {L}_end")
    prof_stamp(e, 0)
    e("s_load_dwordx2 s[42:43], s[0:1], 104")
    if final:
        e("s_load_dwordx2 s[38:39], s[0:1], 88")
    e("v_and_b32 v1, 63, v0")
    e("v_lshrrev_b32 v2, 6, v0")
    e("v_lshlrev_b32 v3, 4, v1")
    e("v_readfirstlane_b32 s3, v2")
    e("s_and_b32 s4, s2, 7")
    e("s_lshr_b32 s5, s2, 3")
    e("s_lshl_b32 s4, s4, 2")
    e("s_and_b32 s6, s5, 3")
    e("s_add_u32 s4, s4, s6")
    e("s_lshr_b32 s5, s5, 2")
    e("s_lshl_b32 s7, s4, 2")
    e("s_add_u32 s7, s7, s3")
    e("s_mul_i32 s7, s7, 57344")
    e(f"s_add_u32 s7, s7, {WS_ACT}")
    e("s_lshl_b32 s6, s3, 12")
    e("s_mul_i32 s8, s5, 229376")
    e("s_add_u32 s8, s8, s6")
    e(f"s_add_u32 s8, s8, {WS_W2P}")
    e("v_lshrrev_b32 v4, 1, v1")
    e("v_lshlrev_b32 v4, 6, v4")
    e("v_and_b32 v5, 1, v1")
    e("v_lshl_add_u32 v4, v5, 4, v4")
    e("s_lshl_b32 s9, s4, 1")
    e("s_lshr_b32 s10, s3, 1")
    e("s_add_u32 s9, s9, s10")
    e(f"s_mul_i32 s9, s9, {XBS}")
    e("s_lshl_b32 s10, s5, 12")
    e("s_add_u32 s9, s9, s10")
    e("s_and_b32 s10, s3, 1")
    e("s_lshl_b32 s10, s10, 5")
    e("s_add_u32 s9, s9, s10")
    e(f"s_add_u32 s10, s9, {xres}")
    e(f"s_add_u32 s11, s10, 1024")
    e("s_lshl_b32 s12, s3, 11")
    e(f"s_add_u32 s12, s12, {RESB}")
    e("s_waitcnt lgkmcnt(0)")
    srd(e, 44, 42, WS_SIZE)
    if touch is not None:
        e("s_cmp_eq_u32 s3, 4")
        e(f"s_cbranch_scc1 {L}_touch")
    ACC = 16
    RES = 32
    TM = 48
    AF = 64
    NB = NS
    ops = []
    def wait_for(tag):
        last = max(i for i, t in enumerate(ops) if t == tag)
        return f"s_waitcnt vmcnt({len(ops)-1-last})"
    def bf(s, k): return 16*(s % NB) + 4*k
    def loads(s):
        out = []
        for j in range(4):
            def g(j=j):
                if j == 0: e(f"s_add_u32 m0, s6, {16384*(s % NS)}")
                e(f"buffer_load_dwordx4 v3, s[44:47], s8 offen offset:{1024*j} lds")
                ops.append(("W", s))
                if j == 3: e("s_add_u32 s8, s8, 16384")
            out.append(g)
        for k in range(4):
            def g(k=k):
                e(f"buffer_load_dwordx4 a[{bf(s,k)}:{bf(s,k)+3}], v3, s[44:47], s7 offen offset:{1024*k}")
                ops.append(("A", s, k))
                if k == 3: e("s_add_u32 s7, s7, 4096")
            out.append(g)
        return out
    for s in range(I):
        for g in loads(s): g()
        if s == 1:
            e("s_mov_b32 m0, s12")
            e("buffer_load_dwordx4 v4, s[44:47], s10 offen lds")
            e("buffer_load_dwordx4 v4, s[44:47], s11 offen offset:1024 lds")
            ops += [("R", 0), ("R", 0)]
    e("v_add_u32 v6, 0x10000, v3")
    e("v_lshrrev_b32 v5, 4, v1")
    e("v_bfe_u32 v7, v1, 2, 2")
    e("v_lshl_add_u32 v7, v5, 3, v7")
    e("v_lshlrev_b32 v7, 5, v7")
    e("v_and_b32 v8, 3, v1")
    e("v_lshl_add_u32 v7, v8, 3, v7")
    e("v_add_u32 v7, s12, v7")
    lops = []
    def lwait(tag):
        last = max(i for i, t in enumerate(lops) if t == tag)
        return f"lgkmcnt({min(15, len(lops)-1-last)})"
    def rd(kk):
        s, k = kk >> 2, kk & 3
        out = []
        for dt in range(4):
            def g(dt=dt):
                ad = 16384*(s % NS) + 4096*k + 1024*dt
                r = AF + 16*k + 4*dt
                e(f"ds_read_b128 v[{r}:{r+3}], {('v3','v6')[ad >> 16]} offset:{ad & 0xffff}")
                lops.append(kk)
            out.append(g)
        return out
    def mfs(s, k):
        out = []
        for dt in range(4):
            c = ACC + 4*dt
            a = AF + 16*k + 4*dt
            cs = "0" if (s == 0 and k == 0) else f"v[{c}:{c+3}]"
            out.append(f"v_mfma_f32_16x16x32_bf16 v[{c}:{c+3}], v[{a}:{a+3}], a[{bf(s,k)}:{bf(s,k)+3}], {cs}")
        return out
    prof_stamp(e, 1)
    e(wait_for(("W", 0)))
    e("s_barrier")
    prof_stamp(e, 2)
    if PROF["on"]: e("s_waitcnt lgkmcnt(0)")
    for kk in range(PDK):
        for g in rd(kk): g()
    pend = []
    for s in range(I, 14):
        pend += [(s, g) for g in loads(s)]
    cred = 0
    allowed = NS - 2
    for s in range(14):
        for k in range(4):
            kk = 4*s + k
            if (kk + PDK) % 4 == 0 and kk + PDK < 56:
                sn = (kk + PDK) >> 2
                while pend and pend[0][0] <= sn: pend.pop(0)[1]()
                e(wait_for(("W", sn)))
                e("s_barrier")
                allowed = sn - 2 + NS
            nx = rd(kk + PDK) if kk + PDK < 56 else []
            e(wait_for(("A", s, k)) + " " + lwait(kk))
            if s == 7 and k == 0 and PROF["on"]:
                prof_stamp(e, 3)
                e("s_waitcnt lgkmcnt(0)")
            for m in mfs(s, k):
                e(m)
                if nx: nx.pop(0)()
                cred += rate
                if pend and pend[0][0] <= allowed and cred >= 1:
                    pend.pop(0)[1](); cred -= 1
                cred = min(cred, 1.5)
        if s == 4:
            for dt in range(4):
                e(f"ds_read_b64_tr_b16 v[{TM+2*dt}:{TM+2*dt+1}], v7 offset:{1024*(dt>>1) + 128*(dt&1)}")
                lops.append("R")
        if s == 5:
            for k in range(8):
                e(f"v_lshlrev_b32 v{RES+2*k}, 16, v{TM+k}")
                e(f"v_and_b32 v{RES+2*k+1}, 0xffff0000, v{TM+k}")
        if s == 6:
            e(f"s_mov_b32 s14, {LN2:#x}")
            e(f"s_mov_b32 s15, {LN2:#x}")
            e("v_and_b32 v8, 15, v1")
            if final:
                srd(e, 48, 38, 2048*512*2)
                e("v_lshlrev_b32 v9, 10, v8")
                e("v_lshl_add_u32 v9, v5, 4, v9")
                e("s_lshl_b32 s16, s4, 2")
                e("s_add_u32 s16, s16, s3")
                e("s_lshl_b32 s16, s16, 14")
                e("s_lshl_b32 s17, s5, 7")
                e("s_add_u32 s16, s16, s17")
            else:
                e("s_mul_i32 s16, s3, 2304")
                e(f"s_add_u32 s16, s16, {OUTB}")
                e("v_mul_u32_u24 v9, 144, v8")
                e("v_lshl_add_u32 v9, v5, 4, v9")
                e("v_add_u32 v9, s16, v9")
                e("v_and_b32 v10, 1, v5")
                e("v_bfe_u32 v11, v1, 2, 2")
                e("v_lshl_add_u32 v10, v10, 3, v11")
                e("v_mul_u32_u24 v10, 144, v10")
                e("v_lshrrev_b32 v11, 5, v1")
                e("v_lshl_add_u32 v10, v11, 5, v10")
                e("v_and_b32 v12, 3, v1")
                e("v_lshl_add_u32 v10, v12, 3, v10")
                e("v_add_u32 v10, s16, v10")
                e("v_lshl_add_u32 v11, v11, 4, v8")
                e("v_lshlrev_b32 v11, 6, v11")
                e("v_and_b32 v12, 1, v5")
                e("v_lshl_add_u32 v11, v12, 4, v11")
                e(f"s_add_u32 s17, s9, {xout}")
                e("v_lshlrev_b32 v12, 2, v8")
                e("v_lshl_add_u32 v12, v5, 13, v12")
                e("s_lshl_b32 s18, s4, 2")
                e("s_add_u32 s18, s18, s3")
                e("s_lshl_b32 s18, s18, 6")
                e(f"s_add_u32 s18, s18, {WS_ST2}")
                e("s_mov_b32 s19, 0x3f803f80")
    prof_stamp(e, 4)
    O = TM
    for k in range(8):
        e(f"v_pk_fma_f32 v[{ACC+2*k}:{ACC+2*k+1}], v[{ACC+2*k}:{ACC+2*k+1}], s[14:15], v[{RES+2*k}:{RES+2*k+1}]")
    for k in range(8):
        e(f"v_cvt_pk_bf16_f32 v{O+k}, v{ACC+2*k}, v{ACC+2*k+1}")
    if final:
        for h in range(2):
            e(f"buffer_store_dwordx4 v[{O+4*h}:{O+4*h+3}], v9, s[48:51], s16 offen offset:{64*h}")
    else:
        if PROF["on"]: e("s_waitcnt lgkmcnt(0)")
        for h in range(2):
            e(f"ds_write_b128 v9, v[{O+4*h}:{O+4*h+3}] offset:{64*h}")
        e(f"v_dot2_f32_bf16 v{RES}, v{O}, s19, 0")
        e(f"v_dot2_f32_bf16 v{RES+1}, v{O}, v{O}, 0")
        e("s_waitcnt lgkmcnt(0)")
        for s_ in range(2):
            for r in range(2):
                e(f"ds_read_b64_tr_b16 v[{AF+4*s_+2*r}:{AF+4*s_+2*r+1}], v10 offset:{64*s_ + 4*144*r}")
        for k in range(1, 8):
            e(f"v_dot2_f32_bf16 v{RES}, v{O+k}, s19, v{RES}")
            e(f"v_dot2_f32_bf16 v{RES+1}, v{O+k}, v{O+k}, v{RES+1}")
        for s_ in range(2):
            e(f"s_waitcnt lgkmcnt({2-2*s_})")
            e(f"buffer_store_dwordx4 v[{AF+4*s_}:{AF+4*s_+3}], v11, s[44:47], s17 offen offset:{2048*s_}{st_mod}")
        e(f"v_permlane16_swap_b32 v{RES}, v{RES+1}")
        e(f"v_add_f32 v{RES}, v{RES}, v{RES+1}")
        e(f"v_mov_b32 v{RES+1}, v{RES}")
        e(f"v_permlane32_swap_b32 v{RES}, v{RES+1}")
        e(f"v_add_f32 v{RES}, v{RES}, v{RES+1}")
        e("s_mov_b32 exec_hi, 0")
        e(f"buffer_atomic_add_f32 v{RES}, v12, s[44:47], s18 offen")
    prof_stamp(e, 5)
    prof_end(e, 6, kidx)
    if touch is not None:
        e("s_endpgm")
        e.label(f"{L}_touch")
        e("v_and_b32 v4, 3, v1")
        e("v_mul_u32_u24 v4, 57344, v4")
        e("v_lshrrev_b32 v5, 2, v1")
        e("v_lshl_add_u32 v4, v5, 10, v4")
        e("v_lshrrev_b32 v5, 3, v1")
        e("v_lshlrev_b32 v5, 12, v5")
        e("v_and_b32 v6, 7, v1")
        e("v_lshl_add_u32 v5, v6, 7, v5")
        e("s_mul_i32 s7, s4, 229376")
        e("s_lshl_b32 s6, s5, 7")
        e("s_add_u32 s7, s7, s6")
        e(f"s_add_u32 s7, s7, {WS_ACT}")
        e("s_mul_i32 s8, s5, 229376")
        e("s_and_b32 s6, s4, 3")
        e("s_lshl_b32 s6, s6, 10")
        e("s_add_u32 s8, s8, s6")
        e(f"s_add_u32 s8, s8, {WS_W2P}")
        for i, w in enumerate("WAWWAWWAWAW"):
            if w == "W":
                e(f"buffer_load_dword v{8+i}, v5, s[44:47], s8 offen")
                e("s_add_u32 s8, s8, 32768")
            else:
                if i == 9: e("s_mov_b32 exec_hi, 0")
                e(f"buffer_load_dword v{8+i}, v4, s[44:47], s7 offen")
                if i == 9: e("s_mov_b32 exec_hi, -1")
                e("s_add_u32 s7, s7, 16384")
            if touch: e(f"s_sleep {touch}")
    e.label(f"{L}_end")
    e("s_endpgm")
    return dict(name=name, grid=256, block=256 if touch is None else 320, lds=LDS, vgpr=128+16*NB, accum=128)
```

```python
XBS = 32768 + 128
WS_XT = [0x000000, 0x202000, 0x404000, 0x606000]
WS_ST0 = 0x810000
WS_ST2 = 0x814000
WS_SL = 0x818000
WS_BL = 0x81A000
WS_KB = 0x900000
KB_COPY = 4112
KB_CH = 2 * KB_COPY
WS_W1P = 0x1000000
WS_W2P = 0x1200000
WS_ACT = 0x1400000
WS_SIZE = 0x2000000
L2E = 0x3fb8aa3b
L2E_LO = 0x32a57060
LN2 = 0x3f317218
```

```python
from emit import *
from layout import *

NT = 64
NS = 28
NP1 = 64
NP2 = 56
NK = 512
NPRE = NT + NS + NP1 + NP2
PREP_WGS = NPRE + NK
PREP_LDS = 32 * 1056

def load_args(e):
    e("s_load_dwordx16 s[16:31], s[0:1], 0")
    e("s_load_dwordx8 s[32:39], s[0:1], 64")
    e("s_load_dwordx4 s[40:43], s[0:1], 96")

def exp_acc(e, dst, x, t0, t1, sL2E, sL2Elo, sLN2):
    e(f"v_mul_f32 v{t0}, s{sL2E}, v{x}")
    e(f"v_fma_f32 v{t1}, v{x}, s{sL2E}, -v{t0}")
    e(f"v_fma_f32 v{t1}, v{x}, s{sL2Elo}, v{t1}")
    e(f"v_exp_f32 v{dst}, v{t0}")
    e(f"v_mul_f32 v{t1}, s{sLN2}, v{t1}")
    e(f"v_fma_f32 v{dst}, v{dst}, v{t1}, v{dst}")

def gen_prep(e, name="prep_kernel"):
    kbegin(e, name)
    e(f"s_cmp_ge_u32 s2, {PREP_WGS}")
    e(f"s_cbranch_scc1 L_prep_end")
    prof_stamp(e, 0, False)
    load_args(e)
    e("v_and_b32 v1, 63, v0")
    e("v_lshrrev_b32 v2, 6, v0")
    e("s_nop 0")
    e("v_readfirstlane_b32 s3, v2")
    e("s_waitcnt lgkmcnt(0)")
    srd(e, 44, 42, WS_SIZE)
    e(f"s_cmp_ge_u32 s2, {NPRE}")
    e("s_cbranch_scc1 L_prep_k")
    e(f"s_cmp_ge_u32 s2, {NT+NS+NP1}")
    e("s_cbranch_scc1 L_prep_p2")
    e(f"s_cmp_ge_u32 s2, {NT+NS}")
    e("s_cbranch_scc1 L_prep_p1")
    e(f"s_cmp_ge_u32 s2, {NT}")
    e("s_cbranch_scc1 L_prep_s")
    srd(e, 48, 16, 2048*512*2)
    e("s_lshl_b32 s4, s2, 15")
    e("v_lshrrev_b32 v3, 3, v0")
    e("v_and_b32 v4, 7, v0")
    e("v_lshlrev_b32 v5, 10, v3")
    e("v_lshl_add_u32 v5, v4, 4, v5")
    for j in range(8):
        e(f"buffer_load_dwordx4 v[{8+4*j}:{11+4*j}], v5, s[48:51], s4 offen offset:{128*j}")
    e("v_mul_u32_u24 v6, 1056, v3")
    e("v_lshl_add_u32 v6, v4, 4, v6")
    e("s_mov_b32 s5, 0x3f803f80")
    e("v_mov_b32 v40, 0")
    e("v_mov_b32 v41, 0")
    for j in range(8):
        e(f"s_waitcnt vmcnt({7-j})")
        e(f"ds_write_b128 v6, v[{8+4*j}:{11+4*j}] offset:{128*j}")
        for k in range(4):
            e(f"v_dot2_f32_bf16 v40, v{8+4*j+k}, s5, v40")
            e(f"v_dot2_f32_bf16 v41, v{8+4*j+k}, v{8+4*j+k}, v41")
    for m in ("quad_perm:[1,0,3,2]", "quad_perm:[2,3,0,1]", "row_half_mirror"):
        e(f"v_add_f32_dpp v40, v40, v40 {m} row_mask:0xf bank_mask:0xf")
        e(f"v_add_f32_dpp v41, v41, v41 {m} row_mask:0xf bank_mask:0xf")
    e("s_lshl_b32 s6, s2, 7")
    e("v_lshlrev_b32 v7, 2, v3")
    e("v_mov_b32 v42, 0")
    e(f"s_add_u32 s7, s6, {WS_ST0}")
    e(f"s_add_u32 s8, s6, {WS_ST0+8192}")
    e(f"s_add_u32 s12, s6, {WS_ST2}")
    e(f"s_add_u32 s13, s6, {WS_ST2+8192}")
    e("v_cmp_eq_u32 vcc, 0, v4")
    e("s_and_saveexec_b64 s[10:11], vcc")
    e("buffer_store_dword v40, v7, s[44:47], s7 offen")
    e("buffer_store_dword v41, v7, s[44:47], s8 offen")
    e("buffer_store_dword v42, v7, s[44:47], s12 offen")
    e("buffer_store_dword v42, v7, s[44:47], s13 offen")
    e("s_mov_b64 exec, s[10:11]")
    e("v_lshrrev_b32 v3, 4, v1")
    e("v_bfe_u32 v4, v1, 2, 2")
    e("v_lshl_add_u32 v4, v3, 3, v4")
    e("v_mul_u32_u24 v4, 1056, v4")
    e("v_and_b32 v5, 3, v1")
    e("v_lshl_add_u32 v4, v5, 3, v4")
    e("s_lshl_b32 s9, s3, 8")
    e("v_add_u32 v4, s9, v4")
    e("v_and_b32 v5, 15, v1")
    e("v_lshlrev_b32 v5, 6, v5")
    e("v_lshl_add_u32 v5, v3, 4, v5")
    e("s_lshl_b32 s9, s3, 13")
    e(f"s_mul_i32 s10, s2, {XBS}")
    e("s_add_u32 s9, s9, s10")
    e(f"s_add_u32 s9, s9, {WS_XT[0]}")
    e("s_waitcnt lgkmcnt(0)")
    e("s_barrier")
    for it in range(8):
        e(f"ds_read_b64_tr_b16 v[{8+4*it}:{9+4*it}], v4 offset:{32*it}")
        e(f"ds_read_b64_tr_b16 v[{10+4*it}:{11+4*it}], v4 offset:{32*it+4*1056}")
    for it in range(8):
        e(f"s_waitcnt lgkmcnt({14-2*it})")
        e(f"buffer_store_dwordx4 v[{8+4*it}:{11+4*it}], v5, s[44:47], s9 offen")
        e(f"s_add_u32 s9, s9, 1024")
    e("s_branch L_prep_fin" if PROF["on"] else "s_endpgm")
    e.label("L_prep_s")
    srd(e, 48, 32, 512*1792*2)
    srd(e, 52, 34, 1792*2)
    e(f"s_sub_u32 s4, s2, {NT}")
    e("s_lshl_b32 s5, s4, 7")
    e("v_lshrrev_b32 v3, 3, v0")
    e("v_and_b32 v4, 7, v0")
    e(f"v_mul_u32_u24 v5, {16*3584}, v3")
    e("v_lshl_add_u32 v5, v4, 4, v5")
    for k in range(16):
        e(f"buffer_load_dwordx4 v[{8+4*k}:{11+4*k}], v5, s[48:51], s5 offen")
        if k < 15: e(f"s_add_u32 s5, s5, 3584")
    e("v_lshlrev_b32 v6, 1, v0")
    e("s_lshl_b32 s5, s4, 7")
    e("buffer_load_ushort v80, v6, s[52:55], s5 offen")
    for i in range(8):
        e(f"v_mov_b32 v{72+i}, 0")
    for k in range(16):
        e(f"s_waitcnt vmcnt({16-k})")
        for q in range(4):
            r = 8+4*k+q
            e(f"v_lshlrev_b32 v82, 16, v{r}")
            e(f"v_and_b32 v83, 0xffff0000, v{r}")
            e(f"v_pk_add_f32 v[{72+2*q}:{73+2*q}], v[{72+2*q}:{73+2*q}], v[82:83]")
    e("v_lshlrev_b32 v5, 8, v3")
    e("v_lshl_add_u32 v5, v4, 5, v5")
    e("ds_write_b128 v5, v[72:75]")
    e("ds_write_b128 v5, v[76:79] offset:16")
    e("s_waitcnt lgkmcnt(0)")
    e("s_barrier")
    e("s_cmp_lg_u32 s3, 0")
    e("s_cbranch_scc1 L_prep_fin" if PROF["on"] else "s_cbranch_scc1 L_prep_end")
    e("v_lshlrev_b32 v5, 2, v0")
    for g in range(32):
        e(f"ds_read_b32 v{8+g}, v5 offset:{256*g}")
    e("s_lshl_b32 s6, s4, 8")
    e(f"s_add_u32 s7, s6, {WS_BL}")
    e(f"s_add_u32 s6, s6, {WS_SL}")
    e(f"s_mov_b32 s8, {L2E:#x}")
    e("s_waitcnt lgkmcnt(0)")
    for g in range(1, 32):
        e(f"v_add_f32 v8, v8, v{8+g}")
    e("v_mul_f32 v8, s8, v8")
    e("s_waitcnt vmcnt(0)")
    e("v_lshlrev_b32 v80, 16, v80")
    e("v_mul_f32 v80, s8, v80")
    e("buffer_store_dword v8, v5, s[44:47], s6 offen")
    e("buffer_store_dword v80, v5, s[44:47], s7 offen")
    e("s_branch L_prep_fin" if PROF["on"] else "s_endpgm")
    e.label("L_prep_p1")
    srd(e, 48, 32, 512*1792*2)
    e(f"s_sub_u32 s4, s2, {NT+NS}")
    e("s_lshr_b32 s5, s4, 2")
    e("s_and_b32 s6, s4, 3")
    e("s_lshl_b32 s7, s5, 5")
    e("s_lshl_b32 s8, s3, 3")
    e("s_add_u32 s7, s7, s8")
    e("s_mul_i32 s7, s7, 3584")
    e("s_mul_i32 s9, s6, 896")
    e("s_add_u32 s7, s7, s9")
    e("s_mul_i32 s9, s8, 928")
    e("v_lshlrev_b32 v3, 4, v1")
    e("s_mov_b64 s[10:11], exec")
    e("s_mov_b32 exec_hi, 0x00ffffff")
    for r in range(8):
        e(f"s_add_u32 m0, s9, {928*r}")
        e("buffer_load_dwordx4 v3, s[48:51], s7 offen lds")
        if r < 7: e("s_add_u32 s7, s7, 3584")
    e("s_mov_b64 exec, s[10:11]")
    e("v_lshrrev_b32 v4, 2, v1")
    e("v_mul_u32_u24 v4, 928, v4")
    e("v_and_b32 v5, 3, v1")
    e("v_lshl_add_u32 v4, v5, 3, v4")
    e("s_mul_i32 s9, s3, 224")
    e("v_add_u32 v4, s9, v4")
    e("s_lshl_b32 s9, s6, 2")
    e("s_add_u32 s9, s9, s3")
    e("s_mul_i32 s9, s9, 7")
    e("s_lshl_b32 s12, s5, 11")
    e(f"s_add_u32 s12, s12, {WS_W1P}")
    e("s_waitcnt vmcnt(0)")
    e("s_barrier")
    for a in range(7):
        e(f"ds_read_b64_tr_b16 v[{8+4*a}:{9+4*a}], v4 offset:{32*a}")
        e(f"ds_read_b64_tr_b16 v[{10+4*a}:{11+4*a}], v4 offset:{32*a+16*928}")
    for a in range(7):
        e("s_lshr_b32 s13, s9, 1")
        e("s_lshl_b32 s13, s13, 15")
        e("s_and_b32 s14, s9, 1")
        e("s_lshl_b32 s14, s14, 10")
        e("s_add_u32 s13, s13, s14")
        e("s_add_u32 s13, s13, s12")
        e(f"s_waitcnt lgkmcnt({12-2*a})")
        e(f"buffer_store_dwordx4 v[{8+4*a}:{11+4*a}], v3, s[44:47], s13 offen")
        if a < 6: e("s_add_u32 s9, s9, 1")
    e("s_branch L_prep_fin" if PROF["on"] else "s_endpgm")
    e.label("L_prep_p2")
    srd(e, 48, 36, 512*1792*2)
    e(f"s_sub_u32 s4, s2, {NT+NS+NP1}")
    e("s_lshl_b32 s8, s4, 5")
    e("s_lshl_b32 s10, s3, 3")
    e("s_add_u32 s8, s8, s10")
    e("s_lshl_b32 s8, s8, 10")
    e("s_mul_i32 s9, s3, 8*1056")
    e("v_lshlrev_b32 v3, 4, v1")
    for r in range(8):
        e(f"s_add_u32 m0, s9, {1056*r}")
        e("buffer_load_dwordx4 v3, s[48:51], s8 offen lds")
        if r < 7: e("s_add_u32 s8, s8, 1024")
    e("v_lshrrev_b32 v4, 2, v1")
    e("v_mul_u32_u24 v4, 1056, v4")
    e("v_and_b32 v5, 3, v1")
    e("v_lshl_add_u32 v4, v5, 4, v4")
    e("s_lshl_b32 s9, s3, 8")
    e("v_add_u32 v4, s9, v4")
    e("s_mul_i32 s9, s3, 112")
    e("s_add_u32 s9, s9, s4")
    e("s_lshl_b32 s9, s9, 12")
    e(f"s_add_u32 s9, s9, {WS_W2P}")
    e(f"s_add_u32 s12, s9, {56*4096}")
    e("s_waitcnt vmcnt(0)")
    e("s_barrier")
    for a in range(8):
        o = 128*(a >> 2) + 64*((a & 3) >> 1) + 8*(a & 1)
        e(f"ds_read_b64_tr_b16 v[{8+4*a}:{9+4*a}], v4 offset:{o}")
        e(f"ds_read_b64_tr_b16 v[{10+4*a}:{11+4*a}], v4 offset:{o+16*1056}")
    for a in range(8):
        e(f"s_waitcnt lgkmcnt({14-2*a})")
        e(f"buffer_store_dwordx4 v[{8+4*a}:{11+4*a}], v3, s[44:47], s{9 if a < 4 else 12} offen offset:{1024*(a&3)}")
    e("s_branch L_prep_fin" if PROF["on"] else "s_endpgm")
    e.label("L_prep_k")
    srd(e, 48, 18, 512*128*2)
    srd(e, 52, 20, 512*128*2)
    srd(e, 56, 22, 512*128*2)
    srd(e, 60, 24, 512*128*2)
    srd(e, 64, 26, 512*2)
    e(f"s_sub_u32 s4, s2, {NPRE}")
    e("s_lshl_b32 s5, s4, 8")
    e("s_lshl_b32 s6, s4, 1")
    e("v_lshlrev_b32 v3, 2, v1")
    e("v_and_b32 v4, 31, v1")
    e("v_lshrrev_b32 v5, 5, v1")
    e("s_lshl_b32 s7, s3, 6")
    e("v_lshl_add_u32 v6, v4, 1, s7")
    e("v_mov_b32 v7, 0")
    e("buffer_load_dword v8, v3, s[56:59], s5 offen")
    e("buffer_load_dword v9, v3, s[60:63], s5 offen")
    e("buffer_load_ushort v10, v6, s[48:51], s5 offen")
    e("buffer_load_ushort v11, v6, s[52:55], s5 offen")
    e("buffer_load_ushort v12, v6, s[56:59], s5 offen")
    e("buffer_load_ushort v13, v6, s[60:63], s5 offen")
    e("buffer_load_ushort v14, v7, s[64:67], s6 offen")
    e(f"s_mov_b32 s8, {L2E:#x}")
    e(f"s_mov_b32 s9, {L2E_LO:#x}")
    e(f"s_mov_b32 s10, {LN2:#x}")
    e("v_mov_b32 v16, v4")
    e("v_lshl_add_u32 v18, v4, 1, 0")
    e("v_add_u32 v18, 240, v18")
    e("v_cmp_lt_u32 vcc, 7, v4")
    e("v_cndmask_b32 v16, v16, v18, vcc")
    e("v_bfe_u32 v18, v4, 1, 1")
    e("v_lshlrev_b32 v18, 8, v18")
    e("v_and_b32 v19, 1, v4")
    e("v_lshl_add_u32 v18, v19, 2, v18")
    e("v_add_u32 v18, 512, v18")
    e("v_cmp_lt_u32 vcc, 11, v4")
    e("v_cndmask_b32 v16, v16, v18, vcc")
    e("v_lshlrev_b32 v18, 8, v4")
    e("v_subrev_u32 v18, 3072, v18")
    e("v_cmp_lt_u32 vcc, 15, v4")
    e("v_cndmask_b32 v16, v16, v18, vcc")
    e("v_cmp_lt_u32 vcc, 20, v4")
    e("v_cndmask_b32 v16, v16, v7, vcc")
    e("v_cvt_f32_u32 v16, v16")
    e("v_lshlrev_b32 v17, 3, v4")
    e("v_cvt_f32_u32 v17, v17")
    e("v_mov_b32 v116, v17")
    e("v_mov_b32 v117, v17")
    e("s_waitcnt vmcnt(5)")
    e("v_and_b32 v8, 0x7fff7fff, v8")
    e("v_and_b32 v9, 0x7fff7fff, v9")
    e("v_pk_max_u16 v8, v8, v9")
    e("v_and_b32 v9, 0xffff, v8")
    e("v_lshrrev_b32 v8, 16, v8")
    e("v_max_u32 v8, v8, v9")
    for m in ("row_shr:1", "row_shr:2", "row_shr:4", "row_shr:8"):
        e(f"v_max_u32_dpp v8, v8, v8 {m} row_mask:0xf bank_mask:0xf")
    e("v_max_u32_dpp v8, v8, v8 row_bcast:15 row_mask:0xa bank_mask:0xf")
    e("v_max_u32_dpp v8, v8, v8 row_bcast:31 row_mask:0xc bank_mask:0xf")
    e("v_readlane_b32 s11, v8, 63")
    e("s_lshr_b32 s11, s11, 7")
    e("s_max_u32 s11, s11, 1")
    e("s_min_u32 s11, s11, 253")
    e("s_sub_u32 s12, 254, s11")
    e("s_lshl_b32 s12, s12, 23")
    e("s_add_u32 s11, s11, 1")
    e("s_lshl_b32 s11, s11, 23")
    e("s_waitcnt vmcnt(0)")
    for r in (10, 11, 12, 13, 14):
        e(f"v_lshlrev_b32 v{r}, 16, v{r}")
    exp_acc(e, 20, 10, 18, 19, 8, 9, 10)
    exp_acc(e, 21, 14, 18, 19, 8, 9, 10)
    e("v_cvt_pk_bf16_f32 v20, v20, v21")
    e("v_and_b32 v21, 0xffff0000, v20")
    e("v_lshlrev_b32 v20, 16, v20")
    e("v_mul_f32 v24, v20, v21")
    e("v_mul_f32 v24, s8, v24")
    e("v_sub_f32 v24, 0, v24")
    e("v_mul_f32 v25, v11, v21")
    e("v_mul_f32 v25, 0.15915494, v25")
    e("v_mul_f32 v26, s12, v12")
    e("v_mul_f32 v27, s12, v13")
    e("v_mul_f32 v15, s11, v21")
    e("s_lshl_b32 s13, s3, 9")
    e("v_lshl_add_u32 v18, v4, 4, s13")
    e("ds_write_b128 v18, v[24:27]")
    e("v_lshl_add_u32 v18, v5, 6, s13")
    for i in range(16):
        e(f"v_mov_b32 v{100+i}, 0")
    e("s_mov_b32 s14, 0")
    e("s_waitcnt lgkmcnt(0)")
    e.label("L_prep_kloop")
    P = [28, 32, 36, 40]
    for m in range(4):
        e(f"ds_read_b128 v[{P[m]}:{P[m]+3}], v18 offset:{16*m}")
    e("v_add_u32 v18, 128, v18")
    def T(m, xy): return 44 + 6*(2*m+xy)
    e("s_waitcnt lgkmcnt(0)")
    for m in range(4):
        for xy in range(2):
            t = T(m, xy)
            e(f"v_pk_mul_f32 v[{t}:{t+1}], v[{P[m]}:{P[m]+1}], v[{16 if xy == 0 else 116}:{17 if xy == 0 else 117}] op_sel:[0,0] op_sel_hi:[1,0]")
    for m in range(4):
        for xy in range(2):
            t = T(m, xy)
            e(f"v_fract_f32 v{t+1}, v{t+1}")
            e(f"v_exp_f32 v{t+4}, v{t}")
    for m in range(4):
        for xy in range(2):
            t = T(m, xy)
            e(f"v_cos_f32 v{t+2}, v{t+1}")
            e(f"v_sin_f32 v{t+3}, v{t+1}")
    for m in range(4):
        t = T(m, 0)
        e(f"v_pk_mul_f32 v[{t}:{t+1}], v[{t+2}:{t+3}], v[{P[m]+2}:{P[m]+3}] op_sel:[0,0] op_sel_hi:[1,0] neg_hi:[0,1]")
        e(f"v_fma_f32 v{t}, -v{t+3}, v{P[m]+3}, v{t}")
        e(f"v_fma_f32 v{t+1}, -v{t+2}, v{P[m]+3}, v{t+1}")
    for m in range(4):
        for xy in range(2):
            t = T(m, xy)
            sr = t if xy == 0 else t+2
            e(f"v_pk_mul_f32 v[{t+2}:{t+3}], v[{sr}:{sr+1}], v[{t+4}:{t+5}] op_sel:[0,0] op_sel_hi:[1,0]")
    for m in range(4):
        for xy in range(2):
            t = T(m, xy)
            e(f"v_cvt_pk_f16_f32 v{92+4*xy+m}, v{t+2}, v{t+3}")
    e("v_mfma_f32_32x32x16_f16 v[100:115], v[92:95], v[96:99], v[100:115]")
    e("s_add_u32 s14, s14, 1")
    e("s_cmp_lt_u32 s14, 4")
    e("s_cbranch_scc1 L_prep_kloop")
    e("s_mul_i32 s13, s3, 3072")
    e("s_add_u32 s13, s13, 2048")
    e("v_lshlrev_b32 v20, 5, v4")
    e("v_lshl_add_u32 v20, v5, 4, v20")
    e("v_add_u32 v20, s13, v20")
    e("v_lshlrev_b32 v21, 4, v4")
    e(f"v_add_u32 v21, {256*4}, v21")
    e("v_lshlrev_b32 v22, 3, v4")
    e(f"v_add_u32 v22, {384*4}, v22")
    e("v_cmp_eq_u32 vcc, 1, v5")
    e("v_cndmask_b32 v23, v21, v22, vcc")
    e("v_add_u32 v21, 8, v21")
    e(f"v_add_u32 v22, {64*4}, v22")
    e("v_cndmask_b32 v24, v21, v22, vcc")
    e("v_add_u32 v23, s13, v23")
    e("v_add_u32 v24, s13, v24")
    e("v_lshlrev_b32 v25, 2, v4")
    e("v_lshl_add_u32 v25, v5, 9, v25")
    e("v_add_u32 v25, s13, v25")
    e("ds_write_b128 v20, v[100:103]")
    e("ds_write_b64 v23, v[104:105]")
    e("ds_write_b64 v24, v[106:107]")
    for j in range(4):
        e(f"ds_write_b32 v25, v{108+j} offset:{512*4+128*j}")
    e("v_lshlrev_b32 v26, 3, v0")
    for k in range(9):
        e(f"v_add_u32 v{28+k}, {k-1}, v26")
    e("v_max_i32 v28, 0, v28")
    for k in range(9):
        e(f"v_cvt_f32_u32 v{40+k}, v{28+k}")
    e("v_cmp_gt_u32 vcc, 32, v0")
    for k in range(0, 9, 2):
        k2 = min(k+1, 8)
        e(f"v_cvt_pk_bf16_f32 v50, v{40+k}, v{40+k2}")
        e(f"v_and_b32 v{40+k}, 0xffff, v50")
        if k2 != k: e(f"v_lshrrev_b32 v{40+k2}, 16, v50")
    for k in range(9):
        e(f"v_subrev_u32 v{40+k}, {0x4300-128}, v{40+k}")
        e(f"v_cndmask_b32 v{40+k}, v{40+k}, v{28+k}, vcc")
        e(f"v_lshlrev_b32 v{40+k}, 2, v{40+k}")
    e("s_waitcnt lgkmcnt(0)")
    e("s_barrier")
    for k in range(9):
        for w in range(4):
            e(f"ds_read_b32 v{52+4*k+w}, v{40+k} offset:{2048+3072*w}")
    for k in range(9):
        if k == 0: e("s_waitcnt lgkmcnt(15)")
        if k == 5: e("s_waitcnt lgkmcnt(0)")
        if k < 5 and k > 0: pass
        b = 52+4*k
        if k == 0:
            pass
        e(f"v_add_f32 v{b}, v{b}, v{b+1}")
        e(f"v_add_f32 v{b+2}, v{b+2}, v{b+3}")
        e(f"v_add_f32 v{b}, v{b}, v{b+2}")
        e(f"v_mul_f32 v{28+k}, v{b}, v15")
    e("v_cmp_eq_u32 vcc, 0, v0")
    e("v_cndmask_b32 v28, v28, v7, vcc")
    for i in range(4):
        e(f"v_cvt_pk_bf16_f32 v{40+i}, v{29+2*i}, v{30+2*i}")
        e(f"v_cvt_pk_bf16_f32 v{44+i}, v{28+2*i}, v{29+2*i}")
    e(f"s_mul_i32 s5, s4, {KB_CH}")
    e(f"s_add_u32 s5, s5, {WS_KB}")
    e(f"s_add_u32 s6, s5, {KB_COPY}")
    e("v_lshlrev_b32 v26, 4, v0")
    e("buffer_store_dwordx4 v[40:43], v26, s[44:47], s5 offen offset:16")
    e("buffer_store_dwordx4 v[44:47], v26, s[44:47], s6 offen offset:16")
    for i in range(4):
        e(f"v_mov_b32 v{48+i}, 0")
    e("s_and_saveexec_b64 s[10:11], vcc")
    e("s_cbranch_execz L_prep_fin")
    e("buffer_store_dwordx4 v[48:51], v26, s[44:47], s5 offen")
    e("buffer_store_dwordx4 v[48:51], v26, s[44:47], s6 offen")
    e.label("L_prep_fin")
    prof_end(e, 1, 0, False)
    e.label("L_prep_end")
    e("s_endpgm")
    return dict(name=name, grid=PREP_WGS, block=256, lds=PREP_LDS, vgpr=120)
```

```python
import sys, importlib
sys.path.insert(0, "gen2")
from emit import *
from layout import *

HEADER = open("interleave_layers__ssm_conv_s4d__dense_activation_mish__prompt.s.ref").read().split("; Override launch")[0]

def build(gens, order, path):
    e = E()
    infos = {}
    for g in gens:
        info = g(e)
        infos[info["name"]] = info
    out = HEADER
    for n in order:
        i = infos[n]
        out += f"; @launch kernel={n} grid=({i['grid']},1,1) block=({i['block']},1,1) lds={i['lds']}\n"
    out += '.amdgcn_target "amdgcn-amd-amdhsa--gfx950"\n.text\n'
    out += e.text()
    out += '.section .rodata,"a"\n'
    for n, i in infos.items():
        out += kd(n, i["vgpr"], i.get("sgpr", 96), i.get("accum"))
    open(path, "w").write(out)
    print("wrote", path, len(out), "bytes; nops inserted", e.nops)
    return infos
```

```python
import sys
from top import *
from prep import *
from conv import *
from g1b import *
from g2t import *
PROF["on"] = len(sys.argv) > 2 and sys.argv[2] == "prof"
path = sys.argv[1] if len(sys.argv) > 1 else "full.s"
kw = eval(sys.argv[3]) if len(sys.argv) > 3 else {}
g1 = kw.get("g1", {}); g2 = kw.get("g2", {})
build([gen_prep,
       lambda e: gen_conv(e, "conv1_kernel", WS_XT[0], WS_XT[1], WS_ST0),
       lambda e: gen_gemm1(e, "gemm1a_kernel", WS_XT[1], **g1),
       lambda e: gen_gemm2(e, "gemm2a_kernel", WS_XT[1], WS_XT[2], False, **g2),
       lambda e: gen_conv(e, "conv2_kernel", WS_XT[2], WS_XT[3], WS_ST2, kidx=4),
       lambda e: gen_gemm1(e, "gemm1b_kernel", WS_XT[3], kidx=5, **g1),
       lambda e: gen_gemm2(e, "gemm2b_kernel", WS_XT[3], 0, True, kidx=6, **g2),
       ],
      ["prep_kernel", "conv1_kernel", "gemm1a_kernel", "gemm2a_kernel", "conv2_kernel", "gemm1b_kernel", "gemm2b_kernel"], path)
```

```python
import re

TRANS = ("v_exp_f32", "v_log_f32", "v_rcp_f32", "v_rsq_f32", "v_sqrt_f32", "v_sin_f32", "v_cos_f32",
         "v_rcp_iflag_f32", "v_exp_f16", "v_log_f16", "v_rcp_f16", "v_rsq_f16", "v_sqrt_f16")
RMW = ("v_fmac_f32", "v_dot2c_f32_bf16", "v_dot2c_f32_f16", "v_pk_fmac_f16", "v_fmac_f16", "v_fmac_f64")

_reg_re = re.compile(r"(?<![\w.])([vas])\[(\d+):(\d+)\]|(?<![\w.])([vas])(\d+)(?![\w])|(?<![\w])(vcc|exec|m0)(?:_lo|_hi)?(?![\w])")

def regs_of(op):
    out = set()
    for m in _reg_re.finditer(op):
        if m.group(1):
            for i in range(int(m.group(2)), int(m.group(3)) + 1):
                out.add((m.group(1), i))
        elif m.group(4):
            out.add((m.group(4), int(m.group(5))))
        else:
            out.add(("x", m.group(6)))
    return out

def split_ops(s):
    ops, depth, cur = [], 0, ""
    for ch in s:
        if ch in "[(":
            depth += 1
        if ch in "])":
            depth -= 1
        if ch == "," and depth == 0:
            ops.append(cur.strip()); cur = ""
        else:
            cur += ch
    if cur.strip():
        ops.append(cur.strip())
    return ops

class Ins:
    def __init__(self, text):
        self.text = text
        t = text.split(";")[0].strip()
        parts = t.split(None, 1)
        self.op = parts[0]
        op = self.op
        if op.endswith("_e32") or op.endswith("_e64") or op.endswith("_dpp"):
            op = op[:-4]
        self.base = op
        rest = parts[1] if len(parts) > 1 else ""
        ops = split_ops(rest)
        self.mods = ""
        if ops:
            sp = ops[-1].split(None, 1)
            if len(sp) > 1 and not ops[-1].startswith("-") :
                ops[-1] = sp[0]; self.mods = sp[1]
            elif len(sp) > 1:
                ops[-1] = sp[0]; self.mods = sp[1]
        self.ops = ops
        self.w = set(); self.r = set()
        self.kind = "other"
        self.srcA = self.srcB = self.srcC = set()
        self.states = 1
        R = [regs_of(o) for o in ops]
        if op.startswith("v_mfma"):
            self.kind = "mfma"
            self.w = R[0]; self.srcA = R[1]; self.srcB = R[2]; self.srcC = R[3]
            self.r = R[1] | R[2] | R[3]
            if "32x32x16" in op or "32x32x8" in op or "16x16x4_f32" in op: self.passes = 8
            elif "16x16x32" in op or "16x16x16" in op: self.passes = 4
            elif "32x32x2_f32" in op: self.passes = 16
            else: raise ValueError("unknown mfma " + op)
            self.xdl = not op.endswith("_f32") or "bf16" in op or "f16" in op
            if op.endswith("x2_f32") or op.endswith("x4_f32"): self.xdl = False
        elif op.startswith("v_"):
            self.kind = "valu"
            nd = 1
            if op.startswith("v_add_co") or op.startswith("v_sub_co") or op.startswith("v_addc_co") or op.startswith("v_subb_co") or op.startswith("v_subrev_co") or op.startswith("v_div_scale") or op.startswith("v_mad_u64"):
                nd = 2
            if op == "v_nop":
                nd = 0
            for i in range(nd):
                self.w |= R[i]
            for i in range(nd, len(R)):
                self.r |= R[i]
            if op in RMW: self.r |= R[0]
            if op.startswith("v_permlane") and "swap" in op:
                self.w = R[0] | R[1]; self.r = R[0] | R[1]
            if op.startswith("v_cmpx"):
                self.w.add(("x", "exec"))
            if op.startswith("v_writelane"):
                self.r |= R[0]
            if op.startswith("v_cndmask") and len(ops) == 3:
                self.r.add(("x", "vcc"))
            self.trans = op in TRANS
            self.dpp = any(k in self.mods for k in ("row_", "quad_perm", "wave_", "row_bcast", "row_mirror", "row_half"))
            if self.dpp and "bound_ctrl" not in self.mods:
                self.r |= R[0]
            self.opsel_dst = False
        elif op.startswith("buffer_") or op.startswith("global_") or op.startswith("flat_"):
            self.kind = "vmem"
            is_lds = bool(re.search(r"\blds\b", self.mods)) or "load_lds" in op
            if "load" in op and not is_lds:
                self.w = R[0]
                for x in R[1:]: self.r |= x
            elif "atomic" in op and re.search(r"\bsc0\b", self.mods):
                if op.startswith("buffer_"):
                    self.w = R[0]
                    for x in R: self.r |= x
                else:
                    self.w = R[0]
                    for x in R[1:]: self.r |= x
            else:
                for x in R: self.r |= x
            if is_lds: self.r.add(("x", "m0"))
            self.is_lds = is_lds
            self.wide_store = ("store" in op) and ("x4" in op or "x3" in op)
            if self.wide_store:
                self.store_data = R[0] if op.startswith("buffer_") else R[1]
        elif op.startswith("ds_"):
            self.kind = "ds"
            if op.startswith("ds_read") or op.startswith("ds_bpermute") or op.startswith("ds_permute") or op.startswith("ds_swizzle") or "_rtn" in op:
                self.w = R[0]
                for x in R[1:]: self.r |= x
            else:
                for x in R: self.r |= x
        elif op.startswith("s_"):
            self.kind = "salu"
            if op == "s_nop":
                self.states = int(ops[0], 0) + 1
            elif op.startswith("s_cmp") or op.startswith("s_cbranch") or op in ("s_waitcnt", "s_barrier", "s_branch", "s_endpgm", "s_setprio", "s_sleep", "s_bitcmp0_b32", "s_bitcmp1_b32"):
                for x in R: self.r |= x
            else:
                if R:
                    self.w = R[0]
                    for x in R[1:]: self.r |= x
                if "saveexec" in op:
                    self.w.add(("x", "exec"))
            if op.startswith("s_load") or op.startswith("s_buffer_load") or op.startswith("s_memtime") or op.startswith("s_memrealtime"):
                self.kind = "smem"

def isv(regs):
    return {r for r in regs if r[0] in "va"}
def iss(regs):
    return {r for r in regs if r[0] == "s" or r == ("x", "vcc")}

def required(p, c):
    need = 0
    if p.kind == "valu":
        pv = isv(p.w); ps = iss(p.w)
        if c.kind == "mfma" and pv & c.r: need = max(need, 2)
        if c.kind == "valu":
            if p.trans and not c.trans and pv & (c.r | c.w): need = max(need, 1)
            if p.trans and c.trans and pv & c.r: need = max(need, 1)
            if c.base.startswith("v_readfirstlane") or c.base.startswith("v_readlane"):
                if pv & c.r: need = max(need, 1)
                if c.base.startswith("v_readlane") and ps & c.r: need = max(need, 4)
            if c.base.startswith("v_writelane") and ps & c.r: need = max(need, 4)
            if c.dpp and pv & c.r: need = max(need, 2)
            if c.base.startswith("v_permlane") and pv & c.r: need = max(need, 2)
            if ps & c.r: need = max(need, 2)
            if c.base.startswith("v_div_fmas") and ("x", "vcc") in p.w: need = max(need, 4)
            if ("x", "exec") in p.w:
                if c.dpp: need = max(need, 5)
                if c.base.startswith("v_read") or c.base.startswith("v_writelane") or c.base.startswith("v_permlane"): need = max(need, 4)
            if "op_sel" in p.mods and not p.base.startswith("v_pk_") and pv & (c.r | c.w): need = max(need, 1)
            if "dst_sel" in p.mods and pv & (c.r | c.w): need = max(need, 1)
            if p.base.startswith("v_dot") :
                if pv & (c.r | c.w):
                    same = c.base == p.base
                    if same and not (pv & (regs_of(c.ops[1]) | regs_of(c.ops[2]))):
                        pass
                    else:
                        need = max(need, 3)
        if p.base.startswith("v_dot") and c.kind in ("vmem", "ds", "mfma") and pv & c.r: need = max(need, 3)
        if c.kind == "mfma" and ("x", "exec") in p.w: need = max(need, 4)
        if c.kind == "vmem" and ps & c.r: need = max(need, 5)
        if c.kind in ("salu", "smem") and ps & c.r: need = max(need, 1)
    if p.kind == "mfma":
        n = p.passes
        tab_ab = {2: 5, 4: 8, 8: 12, 16: 20} if p.xdl else {2: 4, 4: 6, 8: 10, 16: 18}
        tab_c = {2: 4, 4: 6, 8: 10, 16: 18} if p.xdl else {2: 2, 4: 4, 8: 8, 16: 16}
        if c.kind == "mfma":
            if p.w & (c.srcA | c.srcB): need = max(need, tab_ab[n])
            if p.w & c.srcC:
                if not (p.w == c.srcC and p.passes == c.passes and p.xdl == c.xdl): need = max(need, tab_c[n])
                elif n == 2: need = max(need, 2)
            elif p.w & c.w: need = max(need, tab_c[n])
        elif c.kind in ("valu", "vmem", "ds"):
            if p.w & (c.r | c.w): need = max(need, tab_ab[n])
            if c.kind == "valu" and p.xdl and p.srcC & c.w: need = max(need, {2: 1, 4: 3, 8: 7, 16: 15}[n])
    if p.kind == "salu":
        if ("x", "m0") in p.w and ((c.kind == "vmem" and c.is_lds) or c.base.startswith("s_movrel") or "addtid" in c.base or c.base.startswith("s_sendmsg")):
            need = max(need, 1)
    if p.kind == "vmem" and getattr(p, "wide_store", False):
        if p.store_data & c.w:
            need = max(need, 2 if c.kind == "valu" else 1)
    return need

class E:
    def __init__(self):
        self.lines = []
        self.hist = []
        self.labels = {}
        self.ins = []
        self.nops = 0
        self.fwd = {}
    def raw(self, text):
        self.lines.append(text)
    def comment(self, text):
        self.lines.append("    ; " + text)
    def _push(self, ins):
        for h in self.hist:
            h[1] += ins.states
        self.hist = [h for h in self.hist if h[1] < 24]
        self.hist.append([ins, 0])
        self.ins.append(ins)
        self.lines.append("    " + ins.text)
    def _nop(self, n):
        while n > 0:
            k = min(n, 16)
            self._push(Ins(f"s_nop {k-1}"))
            self.nops += 1
            n -= k
    def __call__(self, text):
        for line in text.strip().split("\n"):
            line = line.strip()
            if not line or line.startswith(";"):
                if line: self.lines.append("    " + line)
                continue
            if line.endswith(":"):
                self.label(line[:-1]); continue
            if line.startswith("."):
                self.lines.append(line); continue
            ins = Ins(line)
            need = 0
            for p, el in self.hist:
                need = max(need, required(p, ins) - el)
            if need > 0:
                self._nop(need)
            if ins.base.startswith("s_cbranch") or ins.base == "s_branch":
                tgt = ins.ops[0]
                if tgt in self.labels:
                    idx = self.labels[tgt]
                    extra = 0
                    acc = 1
                    for c in self.ins[idx: idx + 24]:
                        for p, el in self.hist:
                            extra = max(extra, required(p, c) - el - acc)
                        acc += c.states
                        if acc > 24: break
                    if extra > 0:
                        self._nop(extra)
                else:
                    self.fwd.setdefault(tgt, []).append([[p, el + 1] for p, el in self.hist])
            self._push(ins)
    def label(self, name):
        for snap in self.fwd.pop(name, []):
            self.hist += [[p, el] for p, el in snap]
        self.labels[name] = len(self.ins)
        self.lines.append(name + ":")
    def reset_hist(self):
        self.hist = []
    def drain(self, n=20):
        self._nop(n)
    def text(self):
        return "\n".join(self.lines) + "\n"

def srd(e, d, base, nbytes):
    e(f"s_mov_b32 s{d}, s{base}")
    e(f"s_and_b32 s{d+1}, s{base+1}, 0xffff")
    e(f"s_mov_b32 s{d+2}, {nbytes}")
    e(f"s_mov_b32 s{d+3}, 0x20000")

def srd_off(e, d, base, off, nbytes):
    e(f"s_add_u32 s{d}, s{base}, {off}")
    e(f"s_addc_u32 s{d+1}, s{base+1}, 0")
    e(f"s_and_b32 s{d+1}, s{d+1}, 0xffff")
    e(f"s_mov_b32 s{d+2}, {nbytes}")
    e(f"s_mov_b32 s{d+3}, 0x20000")

def kd(name, vgpr, sgpr=96, accum=None):
    if accum is None:
        accum = (min(vgpr, 256) + 3) // 4 * 4
    return f""".p2align 6
.amdhsa_kernel {name}
  .amdhsa_next_free_vgpr {vgpr}
  .amdhsa_next_free_sgpr {sgpr}
  .amdhsa_accum_offset {accum}
  .amdhsa_group_segment_fixed_size 0
  .amdhsa_kernarg_size 112
  .amdhsa_user_sgpr_count 2
  .amdhsa_user_sgpr_kernarg_segment_ptr 1
  .amdhsa_system_sgpr_workgroup_id_x 1
.end_amdhsa_kernel
"""
def kbegin(e, name):
    e.reset_hist()
    e.raw(f".globl {name}\n.p2align 8\n.type {name},@function")
    e.label(name)

PROF = {"on": False, "k": 0}
WS_PROF = 0x2400000
def prof_stamp(e, i, mt=True):
    if PROF["on"]:
        e(f"s_memrealtime s[{76+2*i}:{77+2*i}]")
        if mt: e(f"s_memtime s[{52+2*i}:{53+2*i}]")
def prof_end(e, n, kidx, mt=True):
    if not PROF["on"]:
        return
    e("s_mov_b64 exec, -1")
    e("s_waitcnt vmcnt(0)")
    prof_stamp(e, n, mt)
    e("s_waitcnt lgkmcnt(0)")
    e("s_lshl_b32 s74, s2, 3")
    e("s_add_u32 s74, s74, s3")
    e("s_lshl_b32 s74, s74, 6")
    e(f"s_add_u32 s74, s74, {WS_PROF + kidx*1024*512}")
    e("v_mov_b32 v0, 0")
    for i in range(n+1):
        e(f"v_mov_b32 v{1+i}, s{76+2*i}")
        if mt: e(f"v_mov_b32 v{9+i}, s{52+2*i}")
    e("s_mov_b64 exec, 1")
    for i in range(n+1):
        e(f"buffer_store_dword v{1+i}, v0, s[44:47], s74 offen offset:{4*i}")
        if mt: e(f"buffer_store_dword v{9+i}, v0, s[44:47], s74 offen offset:{32+4*i}")
```

```python
XBS = 32768 + 128
XS4 = 4096 + 128
WS_X0 = 0x000000
WS_X1 = 0x210000
WS_X2 = 0x420000
WS_X3 = 0x630000
WS_ST0 = 0x840000
WS_ST2 = 0x848000
WS_SL = 0x850000
WS_KB = 0x900000
KB_COPY = 4112
KB_CH = 2 * KB_COPY
WS_W1P = 0x1000000
WS_W2P = 0x1200000
WS_ACT = [0x1400000, 0x1C00000]
ACT_BLK = 112 * 1024
WS_SIZE = 0x3000000
WS_PROF2 = 0x2800000
L2E = 0x3fb8aa3b
L2E_LO = 0x32a57060
LN2 = 0x3f317218
```

```python
from emit import *
from layout import *
from sched import *

SMALL = 95232
G1ST = 97024
WK = 98304
KC_BASE = WK - 512
KC_STRIDE = 4160
XA = WK
PART = WK + 32768
U_BASE = PART
U_CH = 4608
XCH = U_BASE + 2 * U_CH
MAIN_LDS = 163840

vL16, vKA, vUB, vXI, vSI, vUW, vXW, vXR, vXO, vTW, vBF, vA2, vCS, vST, vPW0, vPW1, vPR, vRS, vX2, vAT, vOU, vPROF = range(2, 24)
QR = 24
ACCA, ACCB, FR, EP, RES, STT = 28, 60, 92, 116, 148, 156
CACC, CZ, INA, INB = 116, 60, 28, 92
CPOOL = [76, 80, 84, 88, 112, 148, 152, 156, 48, 52, 56]
XLA = [28, 32, 36, 40, 44, 60, 64, 108]
RING = [28 + 4*i for i in range(8)] + [92 + 4*i for i in range(6)]
sG, sJ = 4, 5
sXIN, sXO, sXT, sAS0, sAS1, sAL, sX2O, sSTA, sOUT, sK0, sK1, sKL = range(6, 18)
sP0, sP1, sC512, sC512b, sEPS, sL2E = 18, 19, 20, 21, 22, 23
sD = 24
sBUD, sLN2 = 28, 29
sB0, sB1, sDG, sAM = 30, 32, 34, 36
sONE, s8F = 38, 39
sO1, sO2 = 40, 52
sT = 56
sW = 72

def w1r(s):
    return f"a[{224+4*s}:{227+4*s}]" if s < 8 else f"v[{160+4*(s-8)}:{163+4*(s-8)}]"
def w2r(s, dt):
    return f"a[{8*s+4*dt}:{8*s+4*dt+3}]"
def R4(r): return f"v[{r}:{r+3}]"
def R2(r): return f"v[{r}:{r+1}]"
def R16(r): return f"v[{r}:{r+15}]"

def gen_main(e, name="main_kernel", stop=None, P=None):
    P = P or {}
    kbegin(e, name)
    L = "L_m"
    t = T(e)
    slow = []
    uid = [0]
    def lab(x):
        uid[0] += 1
        return f"{L}_{x}{uid[0]}"
    e("s_cmp_ge_u32 s2, 256")
    e(f"s_cbranch_scc1 {L}_end")
    if PROF["on"]:
        e(f"v_mov_b32 v{vPROF}, 0")
        t.stamp(vPROF)
    e("s_load_dwordx2 s[42:43], s[0:1], 104")
    e("s_load_dwordx2 s[54:55], s[0:1], 48")
    e("s_load_dwordx2 s[48:49], s[0:1], 88")
    e("v_and_b32 v1, 63, v0")
    e("v_lshrrev_b32 v28, 6, v0")
    e(f"v_lshlrev_b32 v{vL16}, 4, v1")
    e("v_readfirstlane_b32 s3, v28")
    e(f"v_mul_u32_u24 v{vXI}, {XS4}, v0")
    e(f"v_lshlrev_b32 v{vSI}, 6, v0")
    e(f"s_and_b32 s{sT}, s2, 0xe0")
    e(f"s_and_b32 s{sT+1}, s2, 3")
    e(f"s_lshl_b32 s{sT+1}, s{sT+1}, 3")
    e(f"s_bfe_u32 s{sT+2}, s2, 0x30002")
    e(f"s_add_u32 s{sT}, s{sT}, s{sT+1}")
    e(f"s_add_u32 s{sT}, s{sT}, s{sT+2}")
    e(f"s_lshl_b32 s{sXIN}, s{sT}, 4")
    e(f"s_lshr_b32 s{sT+3}, s3, 1")
    e(f"s_and_b32 s{sT+4}, s3, 1")
    e(f"s_lshl_b32 s{sT}, s2, 1")
    e(f"s_add_u32 s{sT}, s{sT}, s{sT+3}")
    e(f"s_mul_i32 s{sK0}, s{sT}, {KB_CH}")
    e(f"s_lshl_b32 s{sT+1}, s{sT+4}, 2")
    e(f"s_sub_u32 s{sK0}, s{sK0}, s{sT+1}")
    e(f"s_add_u32 s{sK0}, s{sK0}, {WS_KB+16}")
    e(f"s_add_u32 s{sK1}, s{sK0}, {KB_COPY}")
    e(f"s_mul_i32 s{sKL}, s3, {2*KC_STRIDE}")
    e(f"s_add_u32 s{sKL}, s{sKL}, {KC_BASE+32}")
    e(f"s_lshl_b32 s{sT+5}, s2, 2")
    e(f"s_and_b32 s{sG}, s2, 7")
    e(f"s_lshl_b32 s{sG}, s{sG}, 2")
    e(f"s_bfe_u32 s{sT}, s2, 0x20003")
    e(f"s_add_u32 s{sG}, s{sG}, s{sT}")
    e(f"s_lshr_b32 s{sJ}, s2, 5")
    e("s_waitcnt lgkmcnt(0)")
    e(f"s_load_dword s{sD+3}, s[54:55], s{sT+5}")
    srd(e, 44, 42, WS_SIZE)

    def in_loads(ly, h, I):
        st = (WS_ST0, WS_ST2)[ly] + 16384*h
        xb = (WS_X0, WS_X2)[ly] + 256*XS4*h
        md = " sc1" if ly else ""
        it = [f"s_mov_b32 s{sT+8}, {st}", f"s_add_u32 s{sT+9}, s{sXIN}, {xb}"]
        for k in range(4):
            it.append(("vm", f"buffer_load_dwordx4 {R4(I+4*k)}, v{vSI}, s[44:47], s{sT+8} offen offset:{16*k}{md}", ("IN", ly, h)))
        it.append(("vm", f"buffer_load_dwordx4 {R4(I+16)}, v{vXI}, s[44:47], s{sT+9} offen{md}", ("IN", ly, h)))
        return [("multi", it)]
    def k_loads(ly):
        it = []
        for c in range(2):
            for j in range(4):
                m = [("vm", f"buffer_load_dwordx4 v{vL16}, s[44:47], s{sK0+c} offen offset:{1024*j} lds", ("K", ly))]
                m = [f"s_add_u32 m0, s{sKL}, {KC_STRIDE*c}"] + m
                it.append(("multi", m))
        return it
    t.run(in_loads(0, 0, INA))
    t.run(k_loads(0))
    t.run(in_loads(0, 1, INB))
    e("s_and_b32 s49, s49, 0xffff")
    e(f"s_mov_b32 s50, {2048*512*2}")
    e("s_mov_b32 s51, 0x20000")
    e(f"s_lshl_b32 s{sXO}, s2, 7")
    e(f"s_mul_i32 s{sXT}, s{sG}, {XBS}")
    e(f"s_lshl_b32 s{sT}, s3, 13")
    e(f"s_add_u32 s{sXT}, s{sXT}, s{sT}")
    e(f"s_mul_i32 s{sAL}, s{sG}, {ACT_BLK}")
    e(f"s_mul_i32 s{sT}, s{sJ}, 7")
    e(f"s_add_u32 s{sT}, s{sT}, s3")
    e(f"s_lshl_b32 s{sT}, s{sT}, 11")
    e(f"s_add_u32 s{sAS0}, s{sAL}, s{sT}")
    e("s_cmp_eq_u32 s3, 3")
    e(f"s_cselect_b32 s{sT}, 0, 8192")
    e(f"s_add_u32 s{sAS1}, s{sAS0}, s{sT}")
    e(f"s_mul_i32 s{sT}, s3, {28*1024}")
    e(f"s_add_u32 s{sAL}, s{sAL}, s{sT}")
    PZ = CACC
    def poison_act(ly, h, pz):
        it = []
        b = WS_ACT[ly] + 32*ACT_BLK*h
        for k, sa in enumerate((sAS0, sAS1)):
            m = [f"s_add_u32 s{sT+10}, s{sa}, {b}"]
            for a in range(2):
                m.append(("vm", f"buffer_store_dwordx4 {R4(pz)}, v{vL16}, s[44:47], s{sT+10} offen offset:{1024*a} sc1", ("PZ", ly, h)))
            it.append(("multi", m))
        return it
    for i in range(4): e(f"v_mov_b32 v{QR+i}, -1")
    t.run(poison_act(0, 0, QR))
    e(f"s_lshl_b32 s{sT}, s{sG}, 2")
    e(f"s_add_u32 s{sT}, s{sT}, s3")
    e(f"s_mul_i32 s{sX2O}, s{sT}, {2*XS4}")
    e(f"s_lshl_b32 s{sT+1}, s{sJ}, 9")
    e(f"s_add_u32 s{sX2O}, s{sX2O}, s{sT+1}")
    e(f"s_lshl_b32 s{sSTA}, s{sT}, 7")
    e(f"s_lshl_b32 s{sOUT}, s{sT}, 13")
    e(f"s_lshl_b32 s{sT+1}, s{sJ}, 7")
    e(f"s_add_u32 s{sOUT}, s{sOUT}, s{sT+1}")
    e(f"s_mov_b32 s{sP0}, 0x05040100")
    e(f"s_mov_b32 s{sP1}, 0x07060302")
    e(f"s_mov_b32 s{sC512}, 0x3b000000")
    e(f"s_mov_b32 s{sC512b}, 0x3b000000")
    e(f"s_mov_b32 s{sEPS}, 0x3727c5ac")
    e(f"s_mov_b32 s{sL2E}, {L2E:#x}")
    e(f"s_mov_b32 s{sLN2}, {LN2:#x}")
    e(f"s_mov_b32 s{sBUD}, 3000")
    e(f"s_mov_b32 s{sONE}, 0x3f803f80")
    e(f"s_mov_b32 s{s8F}, 0x41000000")
    e(f"s_mul_i32 s{sT}, s{sJ}, 229376")
    e(f"s_lshl_b32 s{sT+1}, s3, 15")
    e(f"s_add_u32 s{sW}, s{sT}, s{sT+1}")
    e(f"s_add_u32 s{sW}, s{sW}, {WS_W1P}")
    e(f"s_mul_i32 s{sT+1}, s3, 24")
    e(f"s_min_u32 s{sT+1}, s{sT+1}, 69")
    e(f"s_lshl_b32 s{sW+2}, s{sT+1}, 10")
    e(f"s_add_u32 s{sW+1}, s{sT}, s{sW+2}")
    e(f"s_add_u32 s{sW+1}, s{sW+1}, {WS_W1P+131072}")
    e(f"s_mul_i32 s{sT+1}, s3, {28*2048}")
    e(f"s_add_u32 s{sW+3}, s{sT}, s{sT+1}")
    e(f"s_add_u32 s{sW+3}, s{sW+3}, {WS_W2P}")
    e(f"s_min_u32 s{sT+1}, s3, 2")
    e(f"s_lshl_b32 s{sT+1}, s{sT+1}, 10")
    e(f"s_add_u32 s{sT+11}, s{sT}, s{sT+1}")
    e(f"s_add_u32 s{sT+11}, s{sT+11}, {WS_W1P+131072+95232}")
    e(f"s_lshl_b32 s{sT+12}, s{sJ}, 11")
    e(f"s_add_u32 s{sT+12}, s{sT+12}, {WS_SL}")
    q, i_, a_, b_ = 116, 117, 118, 119
    e(f"v_lshrrev_b32 v{q}, 4, v1")
    e(f"v_and_b32 v{i_}, 15, v1")
    e(f"v_bfe_u32 v{a_}, v1, 2, 2")
    e(f"v_and_b32 v{b_}, 3, v1")
    e(f"v_mul_u32_u24 v{vKA}, {KC_STRIDE}, v{a_}")
    e(f"v_lshl_add_u32 v{vKA}, v{q}, 4, v{vKA}")
    e(f"v_lshl_add_u32 v{vKA}, v{b_}, 3, v{vKA}")
    e(f"s_mul_i32 s{sT}, s{sT+3}, {4*KC_STRIDE}")
    e(f"s_lshl_b32 s{sT+1}, s{sT+4}, 8")
    e(f"s_add_u32 s{sT}, s{sT}, s{sT+1}")
    e(f"s_add_u32 s{sT}, s{sT}, {KC_BASE+8}")
    e(f"v_add_u32 v{vKA}, s{sT}, v{vKA}")
    e(f"v_lshlrev_b32 v{vUB}, 5, v{i_}")
    e(f"v_lshlrev_b32 v120, 4, v{q}")
    e(f"v_sub_u32 v{vUB}, v{vUB}, v120")
    e(f"s_mul_i32 s{sT}, s{sT+3}, {U_CH}")
    e(f"s_sub_u32 s{sT}, s{sT}, s{sT+1}")
    e(f"s_add_u32 s{sT}, s{sT}, {U_BASE+528-192}")
    e(f"v_add_u32 v{vUB}, s{sT}, v{vUB}")
    e(f"v_lshlrev_b32 v{vUW}, 3, v0")
    e(f"v_add_u32 v{vUW}, {U_BASE+512}, v{vUW}")
    def pads():
        it = [f"v_mov_b32 v{120+i}, 0" for i in range(4)]
        it += ["v_lshrrev_b32 v124, 5, v1", f"v_mul_u32_u24 v124, {U_CH}, v124", "v_and_b32 v125, 31, v1",
               "v_lshl_add_u32 v124, v125, 4, v124", f"v_add_u32 v124, {U_BASE}, v124",
               ("ds", "ds_write_b128 v124, v[120:123]", "PAD"),
               "v_bfe_u32 v124, v1, 1, 3", f"v_mul_u32_u24 v124, {KC_STRIDE}, v124", "v_and_b32 v125, 1, v1",
               "v_lshl_add_u32 v124, v125, 4, v124", f"v_add_u32 v124, {KC_BASE}, v124",
               ("ds", "ds_write_b128 v124, v[120:123]", "PAD")]
        return it
    e(f"v_lshl_add_u32 v120, v{q}, 2, v{i_}")
    e("v_and_b32 v120, 15, v120")
    e("v_lshlrev_b32 v120, 4, v120")
    e(f"v_lshl_add_u32 v{vXW}, v{q}, 8, v120")
    e(f"s_lshl_b32 s{sT}, s3, 12")
    e(f"s_add_u32 s{sT}, s{sT}, {XCH}")
    e(f"v_add_u32 v{vXW}, s{sT}, v{vXW}")
    e("v_lshrrev_b32 v120, 2, v1")
    e(f"v_lshl_add_u32 v120, v{b_}, 2, v120")
    e("v_and_b32 v120, 15, v120")
    e("v_lshlrev_b32 v120, 4, v120")
    e(f"v_lshl_add_u32 v{vXR}, v{b_}, 8, v120")
    e(f"s_lshl_b32 s{sT}, s3, 10")
    e(f"s_add_u32 s{sT}, s{sT}, {XCH}")
    e(f"v_add_u32 v{vXR}, s{sT}, v{vXR}")
    e("v_lshrrev_b32 v120, 3, v0")
    e(f"v_mul_u32_u24 v{vXO}, {XBS}, v120")
    e("v_and_b32 v121, 7, v0")
    e(f"v_lshl_add_u32 v{vXO}, v121, 4, v{vXO}")
    late = []
    e(f"s_lshl_b32 s{sT}, s3, 13")
    e(f"s_add_u32 s{sT+1}, s{sT}, {XA}")
    e(f"v_add_u32 v{vTW}, s{sT+1}, v{vL16}")
    e("v_bfe_u32 v122, v1, 3, 1")
    e("v_bfe_u32 v123, v1, 2, 1")
    e("v_lshrrev_b32 v124, 5, v1")
    e("v_lshlrev_b32 v120, 7, v122")
    e("v_lshl_add_u32 v120, v123, 3, v120")
    e(f"v_lshl_add_u32 v120, v{b_}, 4, v120")
    e(f"v_add_u32 v120, {XA}, v120")
    e(f"v_lshl_add_u32 v{vBF}, v124, 9, v120")
    e("v_bfe_u32 v125, v1, 4, 1")
    e(f"v_lshl_add_u32 v{vBF}, v125, 6, v{vBF}")
    e(f"v_lshl_add_u32 v120, v{q}, 9, v120")
    e(f"s_mul_i32 s{sT+1}, s3, 31744")
    e(f"v_add_u32 v{vA2}, s{sT+1}, v{vL16}")
    e("s_cmp_eq_u32 s3, 3")
    e("s_cselect_b64 vcc, -1, 0")
    e(f"v_cndmask_b32 v{vA2}, v{vA2}, v120, vcc")
    e(f"s_lshl_b32 s{sT+1}, s3, 7")
    e(f"s_add_u32 s{sT+1}, s{sT+1}, {SMALL}")
    e(f"v_lshl_add_u32 v{vCS}, v124, 4, s{sT+1}")
    e("v_and_b32 v120, 31, v1")
    e(f"v_mov_b32 v125, {G1ST}")
    e(f"v_lshl_add_u32 v{vST}, v120, 3, v125")
    e("v_lshrrev_b32 v125, 3, v120")
    e("v_lshlrev_b32 v125, 8, v125")
    e("v_lshl_add_u32 v125, v124, 7, v125")
    e(f"s_add_u32 s{sT+1}, s{sT}, {PART}")
    e(f"v_add_u32 v125, s{sT+1}, v125")
    e(f"v_lshl_add_u32 v{vPW0}, v121, 4, v125")
    e("v_add_u32 v120, 2, v121")
    e("v_and_b32 v120, 7, v120")
    e(f"v_lshl_add_u32 v{vPW1}, v120, 4, v125")
    e(f"v_lshl_add_u32 v125, v122, 2, v{q}")
    e("v_and_b32 v120, 2, v121")
    e("v_add_u32 v120, v120, v125")
    e("v_and_b32 v120, 7, v120")
    e("v_lshlrev_b32 v120, 4, v120")
    e("v_and_b32 v123, 1, v121")
    e("v_lshl_add_u32 v120, v123, 7, v120")
    e("v_lshrrev_b32 v123, 1, v121")
    e("v_lshl_add_u32 v120, v123, 11, v120")
    e(f"s_lshl_b32 s{sT+1}, s3, 8")
    e(f"s_add_u32 s{sT+1}, s{sT+1}, {PART}")
    e(f"v_add_u32 v{vPR}, s{sT+1}, v120")
    e(f"v_lshl_add_u32 v120, v121, 2, v{q}")
    e("v_lshlrev_b32 v120, 7, v120")
    e("v_lshl_add_u32 v120, v122, 4, v120")
    e(f"s_lshl_b32 s{sT+1}, s{sJ}, 12")
    e(f"s_lshl_b32 s{sT+2}, s3, 5")
    e(f"s_add_u32 s{sT+1}, s{sT+1}, s{sT+2}")
    e(f"s_add_u32 s{sT+1}, s{sT+1}, {XA}")
    e(f"v_add_u32 v{vRS}, s{sT+1}, v120")
    e(f"v_mul_u32_u24 v{vX2}, {XS4}, v122")
    e(f"v_lshl_add_u32 v{vX2}, v{q}, 7, v{vX2}")
    e(f"v_lshl_add_u32 v{vX2}, v121, 4, v{vX2}")
    e(f"v_lshlrev_b32 v{vAT}, 4, v125")
    e(f"v_lshl_add_u32 v{vAT}, v121, 2, v{vAT}")
    e(f"v_lshlrev_b32 v{vOU}, 10, v125")
    e(f"v_lshl_add_u32 v{vOU}, v121, 4, v{vOU}")
    e("v_and_b32 v120, 1, v1")
    e(f"v_cmp_ne_u32 s[{sB0}:{sB0+1}], 0, v120")
    e("v_and_b32 v120, 2, v1")
    e(f"v_cmp_ne_u32 s[{sB1}:{sB1+1}], 0, v120")
    e(f"v_cmp_eq_u32 s[{sDG}:{sDG+1}], v{a_}, v{q}")
    e(f"v_cmp_gt_u32 s[{sAM}:{sAM+1}], 3, v121")
    e(f"v_cmp_eq_u32 s[{sO1}:{sO1+1}], 0, v121")
    e(f"v_cmp_eq_u32 s[{sO2}:{sO2+1}], 1, v121")
    e("s_waitcnt lgkmcnt(0)")
    e(f"s_lshl_b32 s{sD}, s{sD+3}, 16")
    e(f"s_mov_b32 s{sD+1}, s{sD}")
    e(f"s_and_b32 s{sD+2}, s{sD+3}, 0xffff0000")
    e(f"s_mov_b32 s{sD+3}, s{sD+2}")
    t.run(pads())

    def poison_x2(pz):
        it = []
        for h in range(2):
            it.append(("multi", [f"s_add_u32 s{sT+10}, s{sX2O}, {WS_X2 + 256*XS4*h}",
                                 ("vm", f"buffer_store_dwordx4 {R4(pz)}, v{vX2}, s[44:47], s{sT+10} offen sc1", ("PZ", 0, 1))]))
        return it
    def poison_x3(pz):
        it = []
        for h in range(2):
            it.append(("multi", [f"s_add_u32 s{sT+10}, s{sXO}, {WS_X3 + 32*XBS*h}",
                                 ("vm", f"buffer_store_dwordx4 {R4(pz)}, v{vXO}, s[44:47], s{sT+10} offen sc1", ("PZ", 1, 1))]))
        return it
    t.run(poison_act(0, 1, QR))
    t.run(poison_x2(QR))
    if P.get("pz_early", 1):
        t.run(poison_act(1, 0, QR)); t.run(poison_act(1, 1, QR)); t.run(poison_x3(QR))

    def w1_items():
        it = []
        it.append(("multi", [f"s_mov_b32 m0, {SMALL}",
                             ("vm", f"buffer_load_dwordx4 v{vL16}, s[44:47], s{sT+12} offen lds", "W1"),
                             ("vm", f"buffer_load_dwordx4 v{vL16}, s[44:47], s{sT+12} offen offset:1024 lds", "W1")]))
        a = []; b = []
        for s in range(32):
            m = [("vm", f"buffer_load_dwordx4 {w1r(s)}, v{vL16}, s[44:47], s{sW} offen offset:{1024*(s&3)}", "W1")]
            if s & 3 == 3: m.append(f"s_add_u32 s{sW}, s{sW}, 4096")
            a.append(("multi", m))
        for p in range(24):
            m = [f"s_add_u32 m0, s{sW+2}, {4096*(p>>2)}",
                 ("vm", f"buffer_load_dwordx4 v{vL16}, s[44:47], s{sW+1} offen offset:{1024*(p&3)} lds", "W1")]
            if p & 3 == 3: m.append(f"s_add_u32 s{sW+1}, s{sW+1}, 4096")
            b.append(("multi", m))
        while a or b:
            for _ in range(4):
                if a: it.append(a.pop(0))
            for _ in range(3):
                if b: it.append(b.pop(0))
        it.append(("vm", f"buffer_load_dwordx4 {R4(QR)}, v{vL16}, s[44:47], s{sT+11} offen", "W1"))
        return it
    def w2_items():
        it = []
        for s in range(28):
            for dt in range(2):
                n = 2*s + dt
                m = [("vm", f"buffer_load_dwordx4 {w2r(s, dt)}, v{vL16}, s[44:47], s{sW+3} offen offset:{1024*(n&3)}", "W2")]
                if n & 3 == 3: m.append(f"s_add_u32 s{sW+3}, s{sW+3}, 4096")
                it.append(("multi", m))
        return it
    W1S = Aux(w1_items(), every=P.get("w1_every", 3), keep=True)
    W2S = Aux(w2_items(), every=P.get("w2_every", 2), keep=True)
    for _ in range(P.get("w1_pre", 10)): t.item(W1S.q.pop(0))

    def check(pre, reloads):
        def f():
            ls, lr = lab("s"), lab("r")
            for x in pre: e(x)
            e(f"s_cbranch_vccnz {ls}")
            e.label(lr)
            def g():
                lx = ls + "x"
                e.label(ls)
                e("s_mov_b64 exec, vcc")
                e("s_sleep 3")
                for x in reloads: e(x)
                e("s_waitcnt vmcnt(0)")
                e(f"s_sub_u32 s{sBUD}, s{sBUD}, 1")
                e(f"s_cbranch_scc1 {lx}")
                for x in pre: e(x)
                e(f"s_cbranch_vccnz {ls}")
                e(f"s_branch {lx}y")
                e.label(lx)
                e(f"s_mov_b32 s{sBUD}, 0")
                e.label(lx + "y")
                e("s_mov_b64 exec, -1")
                e("s_nop 4")
                e(f"s_branch {lr}")
            slow.append(g)
            return 4*len(pre) + 4
        return ("call", f)
    def flat(items):
        out = []
        for x in items:
            if isinstance(x, tuple) and x[0] == "multi": out += flat(x[1])
            elif isinstance(x, tuple): out.append(x[1])
            else: out.append(x)
        return out

    def ln_items(ly, h, I, Z, pk):
        it = [("wait", ("IN", ly, h))]
        if ly:
            pre = [f"v_min3_f32 v{I+3}, v{I+2}, v{I+6}, v{I+10}", f"v_min_f32 v{I+3}, v{I+3}, v{I+14}",
                   f"v_cmp_eq_u32 s[{sT+14}:{sT+15}], -1, v{I+16}",
                   f"v_cmp_gt_f32 vcc, s{s8F}, v{I+3}",
                   f"s_or_b64 vcc, vcc, s[{sT+14}:{sT+15}]"]
            it.append(check(pre, flat(in_loads(ly, h, I))))
        M = [I+2, I+3, I+6, I+7]; Rr = [I+10, I+11, I+14, I+15]; U = [I, I+1, I+4, I+5, I+8, I+9, I+12, I+13]
        for k in range(4): it.append(f"v_mul_f32 v{M[k]}, s{sC512}, v{I+4*k}")
        it.append(f"v_mov_b32 v{Z}, s{sEPS}")
        for k in range(4): it.append(f"v_fma_f32 v{Rr[k]}, v{I+4*k+1}, s{sC512}, v{Z}")
        for k in range(4): it.append(f"v_fma_f32 v{Rr[k]}, -v{M[k]}, v{M[k]}, v{Rr[k]}")
        for k in range(4): it.append(f"v_max_f32 v{Rr[k]}, s{sEPS}, v{Rr[k]}")
        for k in range(4): it.append(f"v_rsq_f32 v{Rr[k]}, v{Rr[k]}")
        for k in range(4):
            it.append(f"v_lshlrev_b32 v{Z+k}, 16, v{I+16+k}")
            it.append(f"v_and_b32 v{Z+4+k}, 0xffff0000, v{I+16+k}")
        for k in range(4): it.append(f"v_mul_f32 v{M[k]}, -v{M[k]}, v{Rr[k]}")
        if pk:
            for ch in range(2):
                for p in range(2):
                    it.append(f"v_pk_fma_f32 {R2(U[4*ch+2*p])}, {R2(Z+4*ch+2*p)}, {R2(Rr[2*p])}, {R2(M[2*p])}")
        else:
            for ch in range(2):
                for k in range(4):
                    it.append(f"v_fma_f32 v{U[4*ch+k]}, v{Z+4*ch+k}, v{Rr[k]}, v{M[k]}")
        for ch in range(2):
            for p in range(2):
                it.append(f"v_cvt_pk_bf16_f32 v{I+16+2*ch+p}, v{U[4*ch+2*p]}, v{U[4*ch+2*p+1]}")
            it.append(("ds", f"ds_write_b64 v{vUW}, {R2(I+16+2*ch)} offset:{ch*U_CH + 2048*h}", ("U", h)))
        zi = []
        if pk:
            for ch in range(2):
                for p in range(2):
                    zi.append(f"v_pk_fma_f32 {R2(Z+4*ch+2*p)}, {R2(U[4*ch+2*p])}, s[{sD+2*ch}:{sD+2*ch+1}], {R2(Z+4*ch+2*p)}")
        else:
            for ch in range(2):
                for k in range(4):
                    zi.append(f"v_fma_f32 v{Z+4*ch+k}, v{U[4*ch+k]}, s{sD+2*ch}, v{Z+4*ch+k}")
        return it, zi

    def xch_write(h):
        return [("ds", f"ds_write_b128 v{vXW}, {R4(CACC+16*h+4*k)} offset:{1024*k}", ("XW", h)) for k in range(4)]
    def xch_read(ly, h, TM, Z):
        it = [("ds", f"ds_read_b128 {R4(TM+4*s)}, v{vXR} offset:{4096*s}", ("XR", h, s)) for s in range(4)]
        fin = []
        for ch in range(2):
            fin.append(("wait", None, ("XR", h, 2*ch+1)))
            for k in range(4): fin.append(f"v_add_f32 v{Z+4*ch+k}, v{Z+4*ch+k}, v{TM+8*ch+k}")
            for k in range(4): fin.append(f"v_add_f32 v{Z+4*ch+k}, v{Z+4*ch+k}, v{TM+8*ch+4+k}")
        for k in range(4): fin.append(f"v_cvt_pk_bf16_f32 v{TM+k}, v{Z+2*k}, v{Z+2*k+1}")
        fin.append(f"v_min_u32 v{TM}, -2, v{TM}")
        fin.append(("multi", [f"s_add_u32 s{sT+10}, s{sXO}, {(WS_X1, WS_X3)[ly] + 32*XBS*h}",
                              ("vm", f"buffer_store_dwordx4 {R4(TM)}, v{vXO}, s[44:47], s{sT+10} offen sc1", ("XO", ly, h))]))
        return it, fin
    def xt_loads(ly, h, regs):
        it = []
        for p in range(8):
            m = []
            if p % 4 == 0: m.append(f"s_add_u32 s{sT+8+(p>>2)}, s{sXT}, {(WS_X1, WS_X3)[ly] + 32*XBS*h + 4096*(p>>2)}")
            m.append(("vm", f"buffer_load_dwordx4 {R4(regs[p])}, v{vL16}, s[44:47], s{sT+8+(p>>2)} offen offset:{1024*(p&3)} sc1", ("XT", ly, h)))
            it.append(("multi", m))
        return it
    def xt_stage(ly, h, regs, tmp):
        pre = [f"v_max3_u32 v{tmp}, v{regs[0]}, v{regs[1]}, v{regs[2]}", f"v_max3_u32 v{tmp}, v{tmp}, v{regs[3]}, v{regs[4]}",
               f"v_max3_u32 v{tmp}, v{tmp}, v{regs[5]}, v{regs[6]}", f"v_max_u32 v{tmp}, v{tmp}, v{regs[7]}",
               f"v_cmp_eq_u32 vcc, -1, v{tmp}"]
        it = [("wait", ("XT", ly, h)), check(pre, flat(xt_loads(ly, h, regs)))]
        for p in range(8):
            it.append(("ds", f"ds_write_b128 v{vTW}, {R4(regs[p])} offset:{1024*p + 32768*h}", ("TW", h)))
        return it

    def conv(ly):
        def fops(f):
            k, n, rr = f[1:]
            if k == "A":
                return [f"ds_read_b64_tr_b16 v[{{r0}}:{{r1}}], v{vKA} offset:{8+512*n+64*rr}",
                        f"ds_read_b64_tr_b16 v[{{r2}}:{{r3}}], v{vKA} offset:{512*n+64*rr}"]
            return [f"ds_read_b128 v[{{r0}}:{{r3}}], v{vUB} offset:{512*n+64*(3-rr)}"]
        def mfs(ph, prods):
            out = []; seen = set()
            for rr in range(4):
                for (ta, sb) in prods:
                    I = ta + sb
                    c = R4(CACC + 4*I)
                    cs = c if (I in seen or ph == "BB") else "0"
                    seen.add(I)
                    out.append((f"v_mfma_f32_16x16x32_bf16 {c}, {{0}}, {{1}}, {cs}", [((ly, ph), "A", ta, rr), ((ly, ph), "B", sb, rr)]))
            return out
        AAp = [(ta, sb) for ta in range(4) for sb in range(4) if ta + sb <= 3]
        BAp = [(ta, sb) for ta in range(1, 8) for sb in range(4) if 4 <= ta + sb <= 7]
        BBp = [(ta, sb) for ta in range(4) for sb in range(4, 8) if ta + sb <= 7]
        AAp = [(3, 0), (2, 0), (2, 1), (1, 0), (1, 1), (1, 2), (0, 0), (0, 1), (0, 2), (0, 3)]
        BBp = [(a, b+4) for a, b in AAp]
        wa = [W1S] if ly == 0 else []
        pool = list(CPOOL)
        it, zi = ln_items(ly, 0, INA, CZ, True)
        t.run(it); t.run(zi)
        t.stamp(vPROF)
        t.wait(("K", ly), "all")
        e("s_barrier")
        t.stamp(vPROF)
        if ly: wa = [Aux([("at", P.get("inb_at", 24))] + in_loads(1, 1, INB))]
        stream(t, mfs("AA", AAp), fops, pool, wa, 8)
        if ly: wa = []
        t.stamp(vPROF)
        rd, fin = xch_read(ly, 0, INA, CZ)
        lb, zb = ln_items(ly, 1, INB, CZ+8, False)
        a1 = [("at", 1)] + xch_write(0) + [("at", 6), ("wait", ("PZ", 0, 0) if ly == 0 else None, ("XW", 0)), "s_barrier"] + rd + [("at", 12)] + fin
        a1 += [("at", P.get("lnb_at", 24))] + lb + zb
        stream(t, mfs("BA", BAp), fops, pool, [Aux(a1)] + wa, 8)
        t.stamp(vPROF)
        t.wait(None, ("U", 1))
        e("s_barrier")
        a2 = [("at", P.get("xta_at", 16))] + xt_loads(ly, 0, XLA)
        if ly == 0:
            W1S.every = 1; W1S.maxper = 2
            stream(t, mfs("BB", BBp), fops, pool, wa, 8)
            W1S.flush(t)
            t.run(a2[1:])
        else:
            stream(t, mfs("BB", BBp), fops, pool, [Aux(a2, every=1)], 8)
        t.stamp(vPROF)
        t.run(xch_write(1))
        t.wait(("PZ", 0, 1) if ly == 0 else None, ("XW", 1))
        e("s_barrier")
        rd, fin = xch_read(ly, 1, INB, CZ+8)
        t.run(rd); t.run(fin)
        t.stamp(vPROF)
        t.run(xt_stage(ly, 0, XLA, 112))
        t.wait(None, "all")
        e("s_barrier")
        t.stamp(vPROF)

    def epi_items(ly, h, C, co, sa, first_buf=0):
        rL, mr = STT + 2*h, STT + 2*h + 1
        out = []
        for g in range(2):
            S = EP + 16*((g + first_buf) & 1); B = S + 8
            tag = ("CS", ly, h, C, g)
            rd = [("ds", f"ds_read_b128 {R4(S+4*k)}, v{vCS} offset:{co + 64*g + 32*k}", tag) for k in range(2)]
            rd += [("ds", f"ds_read_b128 {R4(B+4*k)}, v{vCS} offset:{co + 896 + 64*g + 32*k}", tag) for k in range(2)]
            c = C + 8*g
            bd = [("wait", None, tag)]
            bd += [f"v_fma_f32 v{B+k}, v{S+k}, -v{mr}, v{B+k}" for k in range(8)]
            bd += [f"v_fma_f32 v{c+k}, v{c+k}, v{rL}, v{B+k}" for k in range(8)]
            bd += [f"v_exp_f32 v{B+k}, v{c+k}" for k in range(8)]
            bd += [f"v_fma_f32 v{S+k}, v{B+k}, 0.5, 1.0" for k in range(8)]
            bd += [f"v_fma_f32 v{B+k}, v{B+k}, v{S+k}, 1.0" for k in range(8)]
            bd += [f"v_rcp_f32 v{B+k}, v{B+k}" for k in range(8)]
            bd += [f"v_fma_f32 v{B+k}, -v{B+k}, v{c+k}, v{c+k}" for k in range(8)]
            bd += [f"v_cvt_pk_bf16_f32 v{S+k}, v{B+2*k}, v{B+2*k+1}" for k in range(4)]
            bd += [f"v_min_u32 v{S}, -2, v{S}"]
            bd += [("multi", [f"s_add_u32 s{sT+10}, s{sa}, {WS_ACT[ly] + 32*ACT_BLK*h}",
                              ("vm", f"buffer_store_dwordx4 {R4(S)}, v{vL16}, s[44:47], s{sT+10} offen offset:{1024*g} sc1", ("AS", ly, h))])]
            out.append((rd, bd))
        return out
    def epilogue(ly, h, two):
        A = (ACCA, ACCB)[h]
        gs = epi_items(ly, h, A, 0, sAS0)
        if two: gs += epi_items(ly, h, A+16, 512, sAS1)
        it = [("ds", f"ds_read_b64 {R2(STT+2*h)}, v{vST} offset:{256*h}", ("ST", ly, h))]
        it += gs[0][0] + gs[1][0]
        for k, (rd, bd) in enumerate(gs):
            it += bd
            if k + 2 < len(gs): it += gs[k+2][0]
        return it
    def res_items(h):
        r = RES + 4*h; x = STT + 2
        return [("ds", f"ds_read_b128 {R4(r)}, v{vRS} offset:{32768*h}", ("RS", h)), ("at", 6), ("wait", None, ("RS", h)),
                f"v_perm_b32 v{x}, v{r+2}, v{r}, s{sP0}", f"v_perm_b32 v{x+1}, v{r+2}, v{r}, s{sP1}",
                f"v_perm_b32 v{r+2}, v{r+3}, v{r+1}, s{sP0}", f"v_perm_b32 v{r+3}, v{r+3}, v{r+1}, s{sP1}",
                f"v_mov_b32 v{r}, v{x}", f"v_mov_b32 v{r+1}, v{x+1}",
                f"v_permlane16_swap_b32 v{r+2}, v{r+3}", f"v_permlane16_swap_b32 v{r}, v{r+1}", ("at", 8),
                f"v_permlane32_swap_b32 v{r}, v{r+2}", f"v_permlane32_swap_b32 v{r+1}, v{r+3}"]
    ORD = [s for p in range(2) for s in range(14*p, 14*p+8)] + [s for p in range(2) for s in range(14*p+8, 14*p+14)]
    def act_load(ly, n):
        h, s = n // 28, ORD[n % 28]
        r = RING[n % len(RING)]
        return ("multi", [f"s_add_u32 s{sT+13}, s{sAL}, {WS_ACT[ly] + 32*ACT_BLK*h + 4096*(s>>2)}",
                          ("vm", f"buffer_load_dwordx4 {R4(r)}, v{vL16}, s[44:47], s{sT+13} offen offset:{1024*(s&3)} sc1", ("AL", ly, n))])

    def gemm1(ly):
        XLB = [ACCB + 4*i for i in range(8)]
        l3, lj = lab("w3"), lab("j")
        e("s_cmp_eq_u32 s3, 3")
        e(f"s_cbranch_scc1 {l3}")
        snap = t.snap()
        w2q = list(W2S.q)
        ends = []
        for w3 in (0, 1):
            if w3:
                e.label(l3)
                t.restore(snap)
                W2S.q = list(w2q)
            wa = [W2S] if ly == 0 else []
            for h in range(2):
                A = (ACCA, ACCB)[h]
                def fops(f):
                    k, s = f[1:3]
                    if k == "B":
                        o = 32768*h + 1024*s
                        return [f"ds_read_b64_tr_b16 v[{{r0}}:{{r1}}], v{vBF} offset:{o}", f"ds_read_b64_tr_b16 v[{{r2}}:{{r3}}], v{vBF} offset:{o+256}"]
                    if k == "A":
                        return [f"ds_read_b128 v[{{r0}}:{{r3}}], v{vA2} offset:{1024*s}"]
                    o = 32768*h + 2048*s + 64*f[3]
                    return [f"ds_read_b64_tr_b16 v[{{r0}}:{{r1}}], v{vA2} offset:{o}", f"ds_read_b64_tr_b16 v[{{r2}}:{{r3}}], v{vA2} offset:{o+256}"]
                u = (ly, h, w3)
                pool = [FR + 4*i for i in range(6)]
                if h == 0:
                    ax = res_items(0) + [("at", P.get("xtb_at", 24))] + xt_loads(ly, 1, XLB) + [("at", P.get("xtb_st", 50))] + xt_stage(ly, 1, XLB, EP+20)
                else:
                    ax = epilogue(ly, 0, not w3)
                    ri = [x for x in res_items(1) if not (isinstance(x, tuple) and x[0] == "at")]
                    ax = ri[:1] + ax + ri[1:]
                if not w3:
                    mf = []
                    for s in range(32):
                        c0, c1 = R16(A), R16(A+16)
                        mf.append((f"v_mfma_f32_32x32x16_bf16 {c0}, {w1r(s)}, {{0}}, {c0 if s else 0}", [(u, "B", s)]))
                        if s < 31: mf.append((f"v_mfma_f32_32x32x16_bf16 {c1}, {{0}}, {{1}}, {c1 if s else 0}", [(u, "A", s), (u, "B", s)]))
                        else: mf.append((f"v_mfma_f32_32x32x16_bf16 {c1}, {R4(QR)}, {{0}}, {c1}", [(u, "B", s)]))
                    stream(t, mf, fops, pool, [Aux(ax)] + wa, 24, look=4)
                else:
                    ONE = QR
                    if h == 0:
                        t.wait("W1" if ly == 0 else None)
                        for r in range(4): e(f"v_mov_b32 v{ONE+r}, s{sONE}")
                    mf = []
                    for ks in range(16):
                        for lt in range(2):
                            s_, g_ = R4(A+16+4*lt), R4(A+24+4*lt)
                            mf.append((f"v_mfma_f32_16x16x32_bf16 {s_}, {R4(ONE)}, {{0}}, {s_ if ks else 0}", [(u, "S", ks, lt)]))
                            mf.append((f"v_mfma_f32_16x16x32_bf16 {g_}, {{0}}, {{0}}, {g_ if ks else 0}", [(u, "S", ks, lt)]))
                    def rescale(items, f):
                        return [("at", f(x[1])) if isinstance(x, tuple) and x[0] == "at" else x for x in items]
                    axo = Aux(rescale(ax, lambda n: 2*n), keep=True)
                    ev = W2S.every
                    W2S.every = 2*ev
                    stream(t, mf, fops, pool, [axo] + wa, 8, look=8)
                    W2S.every = ev
                    st = []
                    for lt in range(2):
                        g = A+24+4*lt
                        st.append(f"v_cndmask_b32 v{g}, v{g}, v{g+1}, s[{sB0}:{sB0+1}]")
                        st.append(f"v_cndmask_b32 v{g+2}, v{g+2}, v{g+3}, s[{sB0}:{sB0+1}]")
                    st.append(f"v_mov_b32 v{A+17}, s{sEPS}")
                    for lt in range(2):
                        g = A+24+4*lt
                        st.append(f"v_cndmask_b32 v{g}, v{g}, v{g+2}, s[{sB1}:{sB1+1}]")
                    for lt in range(2):
                        st.append(f"v_mul_f32 v{A+16+4*lt}, s{sC512}, v{A+16+4*lt}")
                        st.append(f"v_fma_f32 v{A+24+4*lt}, v{A+24+4*lt}, s{sC512}, v{A+17}")
                    for lt in range(2): st.append(f"v_fma_f32 v{A+24+4*lt}, -v{A+16+4*lt}, v{A+16+4*lt}, v{A+24+4*lt}")
                    for lt in range(2): st.append(f"v_max_f32 v{A+24+4*lt}, s{sEPS}, v{A+24+4*lt}")
                    for lt in range(2): st.append(f"v_rsq_f32 v{A+24+4*lt}, v{A+24+4*lt}")
                    st.append(f"v_and_b32 v{A+18}, 15, v1")
                    st.append(f"v_lshlrev_b32 v{A+18}, 3, v{A+18}")
                    st.append(f"v_add_u32 v{A+18}, {G1ST}, v{A+18}")
                    for lt in range(2):
                        st.append(f"v_mul_f32 v{A+16+4*lt+1}, v{A+16+4*lt}, v{A+24+4*lt}")
                        st.append(f"v_mul_f32 v{A+16+4*lt}, s{sL2E}, v{A+24+4*lt}")
                    st.append(("multi", [f"s_mov_b64 exec, s[{sDG}:{sDG+1}]"] +
                               [("ds", f"ds_write_b64 v{A+18}, {R2(A+16+4*lt)} offset:{256*h+128*lt}", ("SW", h)) for lt in range(2)] +
                               ["s_mov_b64 exec, -1"]))
                    axo.q = rescale(axo.q, lambda n: n//2 - 32); axo.keep = False
                    mf = []
                    for s in range(32):
                        c0 = R16(A)
                        mf.append((f"v_mfma_f32_32x32x16_bf16 {c0}, {w1r(s)}, {{0}}, {c0 if s else 0}", [(u, "B", s)]))
                    a0 = Aux([("at", 1)] + st)
                    stream(t, mf, fops, pool, [a0, axo] + wa, 24, look=3)
                t.stamp(vPROF)
                t.wait(None, "all")
                e("s_barrier")
            if ly == 0:
                W2S.flush(t)
                t.run(k_loads(1))
            ep = epilogue(ly, 1, not w3)
            nl = len(RING)
            st0 = P.get("al_at", 0.3)
            pos = [int(len(ep) * (st0 + (1 - st0) * k / nl)) for k in range(nl)]
            n = 0
            for k, x in enumerate(ep):
                while n < nl and pos[n] <= k:
                    t.item(act_load(ly, n)); n += 1
                t.item(x)
            while n < nl:
                t.item(act_load(ly, n)); n += 1
            t.stamp(vPROF)
            ends.append(t.snap())
            if not w3: e(f"s_branch {lj}")
        e.label(lj)
        t.merge(ends)

    def gemm2(ly):
        nl = len(RING)
        G = 4
        TMP = ACCB
        for h in range(2):
            nxt = []
            mf = []
            for k in range(28):
                n = 28*h + k
                s = ORD[k]
                r = RING[n % nl]
                if k % G == 0:
                    grp = list(range(n, n + G))
                    regs = [RING[x % nl] for x in grp]
                    t.wait([("AL", ly, x) for x in grp] + (["W2"] if (ly == 0 and n == 0) else []))
                    infl = [x for x in range(n, 56) if t.has(("AL", ly, x))]
                    pre = [f"v_max3_u32 v{STT}, v{regs[0]}, v{regs[1]}, v{regs[2]}", f"v_max_u32 v{STT}, v{STT}, v{regs[3]}", f"v_cmp_eq_u32 vcc, -1, v{STT}"]
                    rl = ["s_mov_b64 exec, -1"] + flat([act_load(ly, x) for x in infl])
                    t.item(check(pre, rl))
                for dt in range(2):
                    c = R16(EP + 16*dt)
                    e(f"v_mfma_f32_32x32x16_bf16 {c}, {w2r(s, dt)}, {R4(r)}, {c if k else 0}")
                lim = P.get("alb_at", 14)
                m = n + nl
                if m < 56: t.item(act_load(ly, m))
                if ly == 0 and n == 28 + P.get("ina_at", 20): t.run(in_loads(1, 0, INA))
            t.stamp(vPROF)
            if h == 1: e("s_barrier")
            for dt in range(2):
                for a in range(4):
                    t.lds(f"ds_write_b128 v{(vPW0, vPW1)[a>>1]}, {R4(EP+16*dt+4*a)} offset:{(4*dt+a)*1024}", "PW")
            rs = RES + 4*h
            X = EP
            t.wait(("PZ", 1, 1) if (ly == 0 and h == 0) else None, "PW")
            e("s_barrier")
            for s in range(4):
                for b in range(2):
                    t.lds(f"ds_read_b128 {R4(TMP+8*s+4*b)}, v{vPR} offset:{8192*s+1024*b}", ("PR", s))
            for k in range(4):
                e(f"v_lshlrev_b32 v{X+2*k}, 16, v{rs+k}")
                e(f"v_and_b32 v{X+2*k+1}, 0xffff0000, v{rs+k}")
            t.wait(None, ("PR", 1))
            for p in range(4): e(f"v_pk_add_f32 {R2(TMP+2*p)}, {R2(TMP+2*p)}, {R2(TMP+8+2*p)}")
            t.wait(None, ("PR", 3))
            for p in range(4): e(f"v_pk_add_f32 {R2(TMP+16+2*p)}, {R2(TMP+16+2*p)}, {R2(TMP+24+2*p)}")
            for p in range(4): e(f"v_pk_add_f32 {R2(TMP+2*p)}, {R2(TMP+2*p)}, {R2(TMP+16+2*p)}")
            for k in range(8): e(f"v_fma_f32 v{X+k}, v{TMP+k}, s{sLN2}, v{X+k}")
            O = TMP + 8
            for k in range(4): e(f"v_cvt_pk_bf16_f32 v{O+k}, v{X+2*k}, v{X+2*k+1}")
            if ly == 1:
                e(f"s_add_u32 s{sT+10}, s{sOUT}, {1024*1024*h}")
                t.vmem(f"buffer_store_dwordx4 {R4(O)}, v{vOU}, s[48:51], s{sT+10} offen", "OUT")
            else:
                S1, S2 = TMP+12, TMP+13
                for k in range(4):
                    e(f"v_dot2_f32_bf16 v{S1}, v{O+k}, s{sONE}, {'v%d' % S1 if k else 0}")
                    e(f"v_dot2_f32_bf16 v{S2}, v{O+k}, v{O+k}, {'v%d' % S2 if k else 0}")
                e(f"v_permlane16_swap_b32 v{O}, v{O+1}")
                e(f"v_permlane16_swap_b32 v{O+2}, v{O+3}")
                for m in ("quad_perm:[1,0,3,2]", "quad_perm:[2,3,0,1]", "row_half_mirror"):
                    e(f"v_add_f32_dpp v{S1}, v{S1}, v{S1} {m} row_mask:0xf bank_mask:0xf")
                    e(f"v_add_f32_dpp v{S2}, v{S2}, v{S2} {m} row_mask:0xf bank_mask:0xf")
                    if m.startswith("quad_perm:[1"):
                        e(f"v_permlane32_swap_b32 v{O}, v{O+2}")
                        e(f"v_permlane32_swap_b32 v{O+1}, v{O+3}")
                e(f"v_cndmask_b32 v{S2}, 1.0, v{S2}, s[{sO2}:{sO2+1}]")
                e(f"v_min_u32 v{O}, -2, v{O}")
                e(f"v_cndmask_b32 v{S2}, v{S2}, v{S1}, s[{sO1}:{sO1+1}]")
                e(f"s_add_u32 s{sT+10}, s{sSTA}, {WS_ST2 + 16384*h}")
                e(f"s_add_u32 s{sT+11}, s{sX2O}, {WS_X2 + 256*XS4*h}")
                e(f"s_mov_b64 exec, s[{sAM}:{sAM+1}]")
                t.vmem(f"buffer_atomic_add_f32 v{S2}, v{vAT}, s[44:47], s{sT+10} offen sc1", "SA")
                e("s_mov_b64 exec, -1")
                t.vmem(f"buffer_store_dwordx4 {R4(O)}, v{vX2}, s[44:47], s{sT+11} offen sc1", "X2")
            t.stamp(vPROF)
        if ly == 0:
            e("s_barrier")
            t.run(pads())

    t.stamp(vPROF)
    for ly in range(2):
        conv(ly)
        if stop == ("conv", ly): break
        gemm1(ly)
        if stop == ("g1", ly): break
        gemm2(ly)
        if stop == ("g2", ly): break
    if PROF["on"]:
        e("s_waitcnt vmcnt(0)")
        t.stamp(vPROF)
        e(f"v_writelane_b32 v{vPROF}, s{sBUD}, 63")
        e(f"s_lshl_b32 s{sT}, s2, 10")
        e(f"s_add_u32 s{sT}, s{sT}, {WS_PROF2}")
        e("v_lshlrev_b32 v28, 2, v0")
        e(f"buffer_store_dword v{vPROF}, v28, s[44:47], s{sT} offen")
    e.label(f"{L}_end")
    e("s_endpgm")
    for g in slow: g()
    return dict(name=name, grid=256, block=256, lds=MAIN_LDS, vgpr=512, accum=256, sgpr=96)
```

```python
from emit import *
from layout import *

NT = 128
NS = 28
NP1 = 64
NP2 = 56
NK = 512
NPRE = NT + NS + NP1 + NP2
PREP_WGS = NPRE + NK
PREP_LDS = 32 * 1088

def load_args(e):
    e("s_load_dwordx16 s[16:31], s[0:1], 0")
    e("s_load_dwordx8 s[32:39], s[0:1], 64")
    e("s_load_dwordx4 s[40:43], s[0:1], 96")

def exp_acc(e, dst, x, t0, t1, sL2E, sL2Elo, sLN2):
    e(f"v_mul_f32 v{t0}, s{sL2E}, v{x}")
    e(f"v_fma_f32 v{t1}, v{x}, s{sL2E}, -v{t0}")
    e(f"v_fma_f32 v{t1}, v{x}, s{sL2Elo}, v{t1}")
    e(f"v_exp_f32 v{dst}, v{t0}")
    e(f"v_mul_f32 v{t1}, s{sLN2}, v{t1}")
    e(f"v_fma_f32 v{dst}, v{dst}, v{t1}, v{dst}")

def gen_prep(e, name="prep_kernel"):
    kbegin(e, name)
    e(f"s_cmp_ge_u32 s2, {PREP_WGS}")
    e(f"s_cbranch_scc1 L_prep_end")
    prof_stamp(e, 0, False)
    load_args(e)
    e("v_and_b32 v1, 63, v0")
    e("v_lshrrev_b32 v2, 6, v0")
    e("s_nop 0")
    e("v_readfirstlane_b32 s3, v2")
    e("s_waitcnt lgkmcnt(0)")
    srd(e, 44, 42, WS_SIZE)
    e(f"s_cmp_ge_u32 s2, {NPRE}")
    e("s_cbranch_scc1 L_prep_k")
    e(f"s_cmp_ge_u32 s2, {NT+NS+NP1}")
    e("s_cbranch_scc1 L_prep_p2")
    e(f"s_cmp_ge_u32 s2, {NT+NS}")
    e("s_cbranch_scc1 L_prep_p1")
    e(f"s_cmp_ge_u32 s2, {NT}")
    e("s_cbranch_scc1 L_prep_s")
    srd(e, 48, 16, 2048*512*2)
    e("s_lshl_b32 s4, s2, 2")
    e("s_add_u32 s4, s4, s3")
    e("s_lshl_b32 s5, s4, 12")
    e("v_lshrrev_b32 v3, 4, v1")
    e("v_and_b32 v4, 15, v1")
    e("v_lshlrev_b32 v5, 10, v3")
    e("v_lshl_add_u32 v5, v4, 4, v5")
    for m in range(4):
        e(f"buffer_load_dwordx4 v[{8+4*m}:{11+4*m}], v5, s[48:51], s5 offen offset:{256*m}")
    for i in range(4): e(f"v_mov_b32 v{24+i}, -1")
    e("s_lshr_b32 s6, s2, 1")
    e(f"s_mul_i32 s6, s6, {XBS}")
    e("s_and_b32 s7, s2, 1")
    e("s_lshl_b32 s7, s7, 14")
    e("s_add_u32 s6, s6, s7")
    e(f"s_add_u32 s6, s6, {WS_X1}")
    e("v_lshlrev_b32 v6, 4, v0")
    for i in range(4):
        e(f"buffer_store_dwordx4 v[24:27], v6, s[44:47], s6 offen")
        if i < 3: e("s_add_u32 s6, s6, 4096")
    e("v_lshrrev_b32 v6, 3, v4")
    e("v_lshlrev_b32 v6, 9, v6")
    e("v_lshl_add_u32 v6, v3, 7, v6")
    e("v_and_b32 v7, 7, v1")
    e("v_lshl_add_u32 v6, v7, 4, v6")
    e(f"s_mul_i32 s9, s4, {XS4}")
    e(f"s_add_u32 s9, s9, {WS_X0}")
    e("s_mov_b32 s5, 0x3f803f80")
    e("v_mov_b32 v40, 0")
    e("v_mov_b32 v41, 0")
    e("v_mov_b32 v42, 0x41000000")
    for i in range(5): e(f"v_mov_b32 v{43+i}, 0")
    for m in range(4):
        e(f"s_waitcnt vmcnt({7-m+m})")
        r = 8+4*m
        for k in range(4):
            e(f"v_dot2_f32_bf16 v40, v{r+k}, s5, v40")
            e(f"v_dot2_f32_bf16 v41, v{r+k}, v{r+k}, v41")
        e(f"v_permlane16_swap_b32 v{r}, v{r+1}")
        e(f"v_permlane16_swap_b32 v{r+2}, v{r+3}")
        e(f"v_permlane32_swap_b32 v{r}, v{r+2}")
        e(f"v_permlane32_swap_b32 v{r+1}, v{r+3}")
        e(f"buffer_store_dwordx4 v[{r}:{r+3}], v6, s[44:47], s9 offen offset:{1024*m}")
    for m in ("quad_perm:[1,0,3,2]", "quad_perm:[2,3,0,1]", "row_half_mirror", "row_mirror"):
        e(f"v_add_f32_dpp v40, v40, v40 {m} row_mask:0xf bank_mask:0xf")
        e(f"v_add_f32_dpp v41, v41, v41 {m} row_mask:0xf bank_mask:0xf")
    e("s_lshl_b32 s6, s4, 6")
    e("v_lshlrev_b32 v7, 4, v3")
    e(f"s_add_u32 s7, s6, {WS_ST0}")
    e(f"s_add_u32 s12, s6, {WS_ST2}")
    e("v_cmp_eq_u32 vcc, 0, v4")
    e("s_and_saveexec_b64 s[10:11], vcc")
    e("buffer_store_dwordx4 v[40:43], v7, s[44:47], s7 offen")
    e("buffer_store_dwordx4 v[44:47], v7, s[44:47], s12 offen")
    e("s_branch L_prep_fin" if PROF["on"] else "s_endpgm")
    e.label("L_prep_s")
    srd(e, 48, 32, 512*1792*2)
    srd(e, 52, 34, 1792*2)
    e(f"s_sub_u32 s4, s2, {NT}")
    e("s_lshl_b32 s5, s4, 7")
    e("v_lshrrev_b32 v3, 3, v0")
    e("v_and_b32 v4, 7, v0")
    e(f"v_mul_u32_u24 v5, {16*3584}, v3")
    e("v_lshl_add_u32 v5, v4, 4, v5")
    for k in range(16):
        e(f"buffer_load_dwordx4 v[{8+4*k}:{11+4*k}], v5, s[48:51], s5 offen")
        if k < 15: e(f"s_add_u32 s5, s5, 3584")
    e("v_lshlrev_b32 v6, 1, v0")
    e("s_lshl_b32 s5, s4, 7")
    e("buffer_load_ushort v80, v6, s[52:55], s5 offen")
    for i in range(8):
        e(f"v_mov_b32 v{72+i}, 0")
    for k in range(16):
        e(f"s_waitcnt vmcnt({16-k})")
        for q in range(4):
            r = 8+4*k+q
            e(f"v_lshlrev_b32 v82, 16, v{r}")
            e(f"v_and_b32 v83, 0xffff0000, v{r}")
            e(f"v_pk_add_f32 v[{72+2*q}:{73+2*q}], v[{72+2*q}:{73+2*q}], v[82:83]")
    e("v_lshlrev_b32 v5, 8, v3")
    e("v_lshl_add_u32 v5, v4, 5, v5")
    e("ds_write_b128 v5, v[72:75]")
    e("ds_write_b128 v5, v[76:79] offset:16")
    e("s_waitcnt lgkmcnt(0)")
    e("s_barrier")
    e("s_cmp_lg_u32 s3, 0")
    e("s_cbranch_scc1 L_prep_fin" if PROF["on"] else "s_cbranch_scc1 L_prep_end")
    e("v_lshlrev_b32 v5, 2, v0")
    for g in range(32):
        e(f"ds_read_b32 v{8+g}, v5 offset:{256*g}")
    e("s_lshl_b32 s6, s4, 6")
    e("v_add_u32 v6, s6, v0")
    e("v_lshrrev_b32 v7, 5, v6")
    e("v_mul_u32_u24 v7, 37, v7")
    e("v_lshrrev_b32 v7, 8, v7")
    e("v_mul_u32_u24 v7, 1152, v7")
    e("v_lshl_add_u32 v6, v6, 2, v7")
    e(f"s_mov_b32 s6, {WS_SL}")
    e(f"s_mov_b32 s8, {L2E:#x}")
    e("s_waitcnt lgkmcnt(0)")
    for g in range(1, 32):
        e(f"v_add_f32 v8, v8, v{8+g}")
    e("v_mul_f32 v8, s8, v8")
    e("s_waitcnt vmcnt(0)")
    e("v_lshlrev_b32 v80, 16, v80")
    e("v_mul_f32 v80, s8, v80")
    e("buffer_store_dword v8, v6, s[44:47], s6 offen")
    e("buffer_store_dword v80, v6, s[44:47], s6 offen offset:896")
    e("s_branch L_prep_fin" if PROF["on"] else "s_endpgm")
    e.label("L_prep_p1")
    srd(e, 48, 32, 512*1792*2)
    e(f"s_sub_u32 s4, s2, {NT+NS}")
    e("s_lshr_b32 s5, s4, 2")
    e("s_and_b32 s6, s4, 3")
    e("s_lshl_b32 s7, s5, 5")
    e("s_lshl_b32 s8, s3, 3")
    e("s_add_u32 s7, s7, s8")
    e("s_mul_i32 s7, s7, 3584")
    e("s_mul_i32 s9, s6, 896")
    e("s_add_u32 s7, s7, s9")
    e("s_mul_i32 s9, s8, 960")
    e("v_lshlrev_b32 v3, 4, v1")
    e("s_mov_b64 s[10:11], exec")
    e("s_mov_b32 exec_hi, 0x00ffffff")
    for r in range(8):
        e(f"s_add_u32 m0, s9, {960*r}")
        e("buffer_load_dwordx4 v3, s[48:51], s7 offen lds")
        if r < 7: e("s_add_u32 s7, s7, 3584")
    e("s_mov_b64 exec, s[10:11]")
    e("v_lshrrev_b32 v4, 5, v1")
    e("v_bfe_u32 v5, v1, 2, 2")
    e("v_lshl_add_u32 v4, v4, 3, v5")
    e("v_mul_u32_u24 v4, 960, v4")
    e("v_bfe_u32 v5, v1, 4, 1")
    e("v_lshl_add_u32 v4, v5, 5, v4")
    e("v_and_b32 v5, 3, v1")
    e("v_lshl_add_u32 v4, v5, 3, v4")
    e("s_and_b32 s12, s3, 1")
    e("s_lshr_b32 s13, s3, 1")
    e(f"s_mul_i32 s9, s12, {16*960}")
    e("s_mul_i32 s14, s13, 448")
    e("s_add_u32 s9, s9, s14")
    e("v_add_u32 v4, s9, v4")
    e("s_lshl_b32 s9, s6, 1")
    e("s_add_u32 s9, s9, s13")
    e(f"s_mul_i32 s9, s9, {7*32768}")
    e("s_lshl_b32 s14, s5, 1")
    e("s_add_u32 s14, s14, s12")
    e(f"s_add_u32 s9, s9, {WS_W1P}")
    e("s_mov_b32 s15, 31744")
    e("s_cmp_eq_u32 s14, 31")
    e("s_cselect_b32 s15, 1024, s15")
    e("s_lshl_b32 s14, s14, 10")
    e("s_cmp_eq_u32 s14, 31744")
    e("s_cselect_b32 s16, 95232, s14")
    e("s_add_u32 s16, s16, s9")
    e("s_add_u32 s16, s16, 131072")
    e("s_add_u32 s9, s9, s14")
    e("s_waitcnt vmcnt(0)")
    e("s_barrier")
    for a in range(7):
        e(f"ds_read_b64_tr_b16 v[{8+4*a}:{9+4*a}], v4 offset:{64*a}")
        e(f"ds_read_b64_tr_b16 v[{10+4*a}:{11+4*a}], v4 offset:{64*a+4*960}")
    for a in range(7):
        e(f"s_waitcnt lgkmcnt({12-2*a})")
        e(f"buffer_store_dwordx4 v[{8+4*a}:{11+4*a}], v3, s[44:47], s{9 if a < 4 else 16} offen")
        if a < 3: e("s_add_u32 s9, s9, 32768")
        if a >= 4: e("s_add_u32 s16, s16, s15")
    e("s_branch L_prep_fin" if PROF["on"] else "s_endpgm")
    e.label("L_prep_p2")
    srd(e, 48, 36, 512*1792*2)
    e(f"s_sub_u32 s4, s2, {NT+NS+NP1}")
    e("s_lshl_b32 s8, s4, 5")
    e("s_lshl_b32 s10, s3, 3")
    e("s_add_u32 s8, s8, s10")
    e("s_lshl_b32 s8, s8, 10")
    e("s_mul_i32 s9, s3, 8*1088")
    e("v_lshlrev_b32 v3, 4, v1")
    for r in range(8):
        e(f"s_add_u32 m0, s9, {1088*r}")
        e("buffer_load_dwordx4 v3, s[48:51], s8 offen lds")
        if r < 7: e("s_add_u32 s8, s8, 1024")
    e("v_lshrrev_b32 v4, 5, v1")
    e("v_bfe_u32 v5, v1, 2, 2")
    e("v_lshl_add_u32 v4, v4, 2, v5")
    e("v_mul_u32_u24 v4, 1088, v4")
    e("v_bfe_u32 v5, v1, 4, 1")
    e("v_lshl_add_u32 v4, v5, 5, v4")
    e("v_and_b32 v5, 1, v1")
    e("v_lshl_add_u32 v4, v5, 4, v4")
    e("v_bfe_u32 v5, v1, 1, 1")
    e("v_lshl_add_u32 v4, v5, 3, v4")
    e("s_lshl_b32 s9, s3, 8")
    e("v_add_u32 v4, s9, v4")
    e("s_mul_i32 s9, s3, 112")
    e("s_add_u32 s9, s9, s4")
    e("s_lshl_b32 s9, s9, 12")
    e(f"s_add_u32 s9, s9, {WS_W2P}")
    e(f"s_add_u32 s12, s9, {56*4096}")
    e("s_waitcnt vmcnt(0)")
    e("s_barrier")
    for a in range(8):
        o = 128*(a >> 2) + 16*1088*((a & 3) >> 1) + 64*(a & 1)
        e(f"ds_read_b64_tr_b16 v[{8+4*a}:{9+4*a}], v4 offset:{o}")
        e(f"ds_read_b64_tr_b16 v[{10+4*a}:{11+4*a}], v4 offset:{o+8*1088}")
    for a in range(8):
        e(f"s_waitcnt lgkmcnt({14-2*a})")
        e(f"buffer_store_dwordx4 v[{8+4*a}:{11+4*a}], v3, s[44:47], s{9 if a < 4 else 12} offen offset:{1024*(a&3)}")
    e("s_branch L_prep_fin" if PROF["on"] else "s_endpgm")
    e.label("L_prep_k")
    srd(e, 48, 18, 512*128*2)
    srd(e, 52, 20, 512*128*2)
    srd(e, 56, 22, 512*128*2)
    srd(e, 60, 24, 512*128*2)
    srd(e, 64, 26, 512*2)
    e(f"s_sub_u32 s4, s2, {NPRE}")
    e("s_lshl_b32 s5, s4, 8")
    e("s_lshl_b32 s6, s4, 1")
    e("v_lshlrev_b32 v3, 2, v1")
    e("v_and_b32 v4, 31, v1")
    e("v_lshrrev_b32 v5, 5, v1")
    e("s_lshl_b32 s7, s3, 6")
    e("v_lshl_add_u32 v6, v4, 1, s7")
    e("v_mov_b32 v7, 0")
    e("buffer_load_dword v8, v3, s[56:59], s5 offen")
    e("buffer_load_dword v9, v3, s[60:63], s5 offen")
    e("buffer_load_ushort v10, v6, s[48:51], s5 offen")
    e("buffer_load_ushort v11, v6, s[52:55], s5 offen")
    e("buffer_load_ushort v12, v6, s[56:59], s5 offen")
    e("buffer_load_ushort v13, v6, s[60:63], s5 offen")
    e("buffer_load_ushort v14, v7, s[64:67], s6 offen")
    e(f"s_mov_b32 s8, {L2E:#x}")
    e(f"s_mov_b32 s9, {L2E_LO:#x}")
    e(f"s_mov_b32 s10, {LN2:#x}")
    e("v_mov_b32 v16, v4")
    e("v_lshl_add_u32 v18, v4, 1, 0")
    e("v_add_u32 v18, 240, v18")
    e("v_cmp_lt_u32 vcc, 7, v4")
    e("v_cndmask_b32 v16, v16, v18, vcc")
    e("v_bfe_u32 v18, v4, 1, 1")
    e("v_lshlrev_b32 v18, 8, v18")
    e("v_and_b32 v19, 1, v4")
    e("v_lshl_add_u32 v18, v19, 2, v18")
    e("v_add_u32 v18, 512, v18")
    e("v_cmp_lt_u32 vcc, 11, v4")
    e("v_cndmask_b32 v16, v16, v18, vcc")
    e("v_lshlrev_b32 v18, 8, v4")
    e("v_subrev_u32 v18, 3072, v18")
    e("v_cmp_lt_u32 vcc, 15, v4")
    e("v_cndmask_b32 v16, v16, v18, vcc")
    e("v_cmp_lt_u32 vcc, 20, v4")
    e("v_cndmask_b32 v16, v16, v7, vcc")
    e("v_cvt_f32_u32 v16, v16")
    e("v_lshlrev_b32 v17, 3, v4")
    e("v_cvt_f32_u32 v17, v17")
    e("v_mov_b32 v116, v17")
    e("v_mov_b32 v117, v17")
    e("s_waitcnt vmcnt(5)")
    e("v_and_b32 v8, 0x7fff7fff, v8")
    e("v_and_b32 v9, 0x7fff7fff, v9")
    e("v_pk_max_u16 v8, v8, v9")
    e("v_and_b32 v9, 0xffff, v8")
    e("v_lshrrev_b32 v8, 16, v8")
    e("v_max_u32 v8, v8, v9")
    for m in ("row_shr:1", "row_shr:2", "row_shr:4", "row_shr:8"):
        e(f"v_max_u32_dpp v8, v8, v8 {m} row_mask:0xf bank_mask:0xf")
    e("v_max_u32_dpp v8, v8, v8 row_bcast:15 row_mask:0xa bank_mask:0xf")
    e("v_max_u32_dpp v8, v8, v8 row_bcast:31 row_mask:0xc bank_mask:0xf")
    e("v_readlane_b32 s11, v8, 63")
    e("s_lshr_b32 s11, s11, 7")
    e("s_max_u32 s11, s11, 1")
    e("s_min_u32 s11, s11, 253")
    e("s_sub_u32 s12, 254, s11")
    e("s_lshl_b32 s12, s12, 23")
    e("s_add_u32 s11, s11, 1")
    e("s_lshl_b32 s11, s11, 23")
    e("s_waitcnt vmcnt(0)")
    for r in (10, 11, 12, 13, 14):
        e(f"v_lshlrev_b32 v{r}, 16, v{r}")
    exp_acc(e, 20, 10, 18, 19, 8, 9, 10)
    exp_acc(e, 21, 14, 18, 19, 8, 9, 10)
    e("v_cvt_pk_bf16_f32 v20, v20, v21")
    e("v_and_b32 v21, 0xffff0000, v20")
    e("v_lshlrev_b32 v20, 16, v20")
    e("v_mul_f32 v24, v20, v21")
    e("v_mul_f32 v24, s8, v24")
    e("v_sub_f32 v24, 0, v24")
    e("v_mul_f32 v25, v11, v21")
    e("v_mul_f32 v25, 0.15915494, v25")
    e("v_mul_f32 v26, s12, v12")
    e("v_mul_f32 v27, s12, v13")
    e("v_mul_f32 v15, s11, v21")
    e("s_lshl_b32 s13, s3, 9")
    e("v_lshl_add_u32 v18, v4, 4, s13")
    e("ds_write_b128 v18, v[24:27]")
    e("v_lshl_add_u32 v18, v5, 6, s13")
    for i in range(16):
        e(f"v_mov_b32 v{100+i}, 0")
    e("s_mov_b32 s14, 0")
    e("s_waitcnt lgkmcnt(0)")
    e.label("L_prep_kloop")
    P = [28, 32, 36, 40]
    for m in range(4):
        e(f"ds_read_b128 v[{P[m]}:{P[m]+3}], v18 offset:{16*m}")
    e("v_add_u32 v18, 128, v18")
    def T(m, xy): return 44 + 6*(2*m+xy)
    e("s_waitcnt lgkmcnt(0)")
    for m in range(4):
        for xy in range(2):
            t = T(m, xy)
            e(f"v_pk_mul_f32 v[{t}:{t+1}], v[{P[m]}:{P[m]+1}], v[{16 if xy == 0 else 116}:{17 if xy == 0 else 117}] op_sel:[0,0] op_sel_hi:[1,0]")
    for m in range(4):
        for xy in range(2):
            t = T(m, xy)
            e(f"v_fract_f32 v{t+1}, v{t+1}")
            e(f"v_exp_f32 v{t+4}, v{t}")
    for m in range(4):
        for xy in range(2):
            t = T(m, xy)
            e(f"v_cos_f32 v{t+2}, v{t+1}")
            e(f"v_sin_f32 v{t+3}, v{t+1}")
    for m in range(4):
        t = T(m, 0)
        e(f"v_pk_mul_f32 v[{t}:{t+1}], v[{t+2}:{t+3}], v[{P[m]+2}:{P[m]+3}] op_sel:[0,0] op_sel_hi:[1,0] neg_hi:[0,1]")
        e(f"v_fma_f32 v{t}, -v{t+3}, v{P[m]+3}, v{t}")
        e(f"v_fma_f32 v{t+1}, -v{t+2}, v{P[m]+3}, v{t+1}")
    for m in range(4):
        for xy in range(2):
            t = T(m, xy)
            sr = t if xy == 0 else t+2
            e(f"v_pk_mul_f32 v[{t+2}:{t+3}], v[{sr}:{sr+1}], v[{t+4}:{t+5}] op_sel:[0,0] op_sel_hi:[1,0]")
    for m in range(4):
        for xy in range(2):
            t = T(m, xy)
            e(f"v_cvt_pk_f16_f32 v{92+4*xy+m}, v{t+2}, v{t+3}")
    e("v_mfma_f32_32x32x16_f16 v[100:115], v[92:95], v[96:99], v[100:115]")
    e("s_add_u32 s14, s14, 1")
    e("s_cmp_lt_u32 s14, 4")
    e("s_cbranch_scc1 L_prep_kloop")
    e("s_mul_i32 s13, s3, 3072")
    e("s_add_u32 s13, s13, 2048")
    e("v_lshlrev_b32 v20, 5, v4")
    e("v_lshl_add_u32 v20, v5, 4, v20")
    e("v_add_u32 v20, s13, v20")
    e("v_lshlrev_b32 v21, 4, v4")
    e(f"v_add_u32 v21, {256*4}, v21")
    e("v_lshlrev_b32 v22, 3, v4")
    e(f"v_add_u32 v22, {384*4}, v22")
    e("v_cmp_eq_u32 vcc, 1, v5")
    e("v_cndmask_b32 v23, v21, v22, vcc")
    e("v_add_u32 v21, 8, v21")
    e(f"v_add_u32 v22, {64*4}, v22")
    e("v_cndmask_b32 v24, v21, v22, vcc")
    e("v_add_u32 v23, s13, v23")
    e("v_add_u32 v24, s13, v24")
    e("v_lshlrev_b32 v25, 2, v4")
    e("v_lshl_add_u32 v25, v5, 9, v25")
    e("v_add_u32 v25, s13, v25")
    e("ds_write_b128 v20, v[100:103]")
    e("ds_write_b64 v23, v[104:105]")
    e("ds_write_b64 v24, v[106:107]")
    for j in range(4):
        e(f"ds_write_b32 v25, v{108+j} offset:{512*4+128*j}")
    e("v_lshlrev_b32 v26, 3, v0")
    for k in range(9):
        e(f"v_add_u32 v{28+k}, {k-1}, v26")
    e("v_max_i32 v28, 0, v28")
    for k in range(9):
        e(f"v_cvt_f32_u32 v{40+k}, v{28+k}")
    e("v_cmp_gt_u32 vcc, 32, v0")
    for k in range(0, 9, 2):
        k2 = min(k+1, 8)
        e(f"v_cvt_pk_bf16_f32 v50, v{40+k}, v{40+k2}")
        e(f"v_and_b32 v{40+k}, 0xffff, v50")
        if k2 != k: e(f"v_lshrrev_b32 v{40+k2}, 16, v50")
    for k in range(9):
        e(f"v_subrev_u32 v{40+k}, {0x4300-128}, v{40+k}")
        e(f"v_cndmask_b32 v{40+k}, v{40+k}, v{28+k}, vcc")
        e(f"v_lshlrev_b32 v{40+k}, 2, v{40+k}")
    e("s_waitcnt lgkmcnt(0)")
    e("s_barrier")
    for k in range(9):
        for w in range(4):
            e(f"ds_read_b32 v{52+4*k+w}, v{40+k} offset:{2048+3072*w}")
    for k in range(9):
        if k == 0: e("s_waitcnt lgkmcnt(15)")
        if k == 5: e("s_waitcnt lgkmcnt(0)")
        if k < 5 and k > 0: pass
        b = 52+4*k
        if k == 0:
            pass
        e(f"v_add_f32 v{b}, v{b}, v{b+1}")
        e(f"v_add_f32 v{b+2}, v{b+2}, v{b+3}")
        e(f"v_add_f32 v{b}, v{b}, v{b+2}")
        e(f"v_mul_f32 v{28+k}, v{b}, v15")
    e("v_cmp_eq_u32 vcc, 0, v0")
    e("v_cndmask_b32 v28, v28, v7, vcc")
    for i in range(4):
        e(f"v_cvt_pk_bf16_f32 v{40+i}, v{29+2*i}, v{30+2*i}")
        e(f"v_cvt_pk_bf16_f32 v{44+i}, v{28+2*i}, v{29+2*i}")
    e(f"s_mul_i32 s5, s4, {KB_CH}")
    e(f"s_add_u32 s5, s5, {WS_KB}")
    e(f"s_add_u32 s6, s5, {KB_COPY}")
    e("v_lshlrev_b32 v26, 4, v0")
    e("buffer_store_dwordx4 v[40:43], v26, s[44:47], s5 offen offset:16")
    e("buffer_store_dwordx4 v[44:47], v26, s[44:47], s6 offen offset:16")
    for i in range(4):
        e(f"v_mov_b32 v{48+i}, 0")
    e("s_and_saveexec_b64 s[10:11], vcc")
    e("s_cbranch_execz L_prep_fin")
    e("buffer_store_dwordx4 v[48:51], v26, s[44:47], s5 offen")
    e("buffer_store_dwordx4 v[48:51], v26, s[44:47], s6 offen")
    e.label("L_prep_fin")
    prof_end(e, 1, 0, False)
    e.label("L_prep_end")
    e("s_endpgm")
    return dict(name=name, grid=PREP_WGS, block=256, lds=PREP_LDS, vgpr=120)
```

```python
from emit import *

class T:
    def __init__(s, e):
        s.e = e
        s.vm = []; s.ds = []
        s.vm_done = 0; s.ds_done = 0
        s.nst = 0
    def snap(s):
        return ([list(x) for x in s.vm], list(s.ds), s.vm_done, s.ds_done, s.nst)
    def restore(s, x):
        s.vm, s.ds, s.vm_done, s.ds_done, s.nst = [list(y) for y in x[0]], list(x[1]), x[2], x[3], x[4]
    def has(s, tag):
        return any(tag in x for x in s.vm)
    def merge(s, ends):
        tags = []
        for sn in ends:
            for x in sn[0]:
                for y in x:
                    if y not in tags: tags.append(y)
        d = {}
        for y in tags:
            c = []
            for sn in ends:
                idx = [k for k, x in enumerate(sn[0]) if y in x]
                if idx and max(idx) >= sn[2]: c.append(len(sn[0]) - 1 - max(idx))
            d[y] = min(c) if c else None
        n = max([v for v in d.values() if v is not None] + [0]) + 1
        lst = [[] for _ in range(n)]
        for y in tags:
            if d[y] is not None: lst[n-1-d[y]].append(y)
        s.vm = [[y for y in tags if d[y] is None]] + lst
        s.vm_done = 1
        s.e("s_waitcnt lgkmcnt(0)")
        s.ds = []; s.ds_done = 0
        assert len(set(sn[4] for sn in ends)) == 1
        s.nst = ends[0][4]
    def vmem(s, text, tag=None):
        s.e(text); s.vm.append([tag])
    def lds(s, text, tag=None):
        s.e(text); s.ds.append(tag)
    def _cnt(s, lst, done, tags, cap):
        if tags is None: return None, done
        if tags == "all":
            idx = len(lst) - 1
        else:
            if not isinstance(tags, list): tags = [tags]
            if cap == 63:
                c = [i for i, t in enumerate(lst) if any(y in tags for y in t)]
                for t in tags: assert s.has(t), ("wait on unknown tag", t)
            else:
                c = [i for i, t in enumerate(lst) if t in tags]
                for t in tags: assert t in lst, ("wait on unknown tag", t)
            idx = max(c)
        if idx < done: return None, done
        n = len(lst) - 1 - idx
        if n > cap: n = cap
        return n, len(lst) - n
    def wait(s, vm=None, ds=None):
        a, s.vm_done = s._cnt(s.vm, s.vm_done, vm, 63)
        b, s.ds_done = s._cnt(s.ds, s.ds_done, ds, 15)
        if a is None and b is None: return 0
        t = "s_waitcnt"
        if a is not None: t += f" vmcnt({a})"
        if b is not None: t += f" lgkmcnt({b})"
        s.e(t)
        return 4
    def stamp(s, reg):
        if not PROF["on"]: return
        s.e("s_waitcnt lgkmcnt(0)")
        s.e("s_memrealtime s[92:93]")
        s.e("s_waitcnt lgkmcnt(0)")
        s.ds_done = len(s.ds)
        s.e(f"v_writelane_b32 v{reg}, s92, {s.nst}")
        s.nst += 1
    def item(s, it):
        if isinstance(it, str):
            s.e(it)
            op = it.split()[0]
            if op in TRANS: return 8
            if op.startswith("v_dot2"): return 8
            return 4
        k = it[0]
        if k == "vm": s.vmem(it[1], it[2] if len(it) > 2 else None); return 8
        if k == "ds":
            s.lds(it[1], it[2] if len(it) > 2 else None)
            return 12 if "write_b128" in it[1] else 8 if "write" in it[1] else 4
        if k == "wait": return s.wait(it[1], it[2] if len(it) > 2 else None)
        if k == "call": return it[1]() or 4
        if k == "multi":
            return sum(s.item(x) for x in it[1])
        raise ValueError(it)
    def run(s, items):
        for it in items: s.item(it)

class Aux:
    def __init__(s, items, every=None, maxper=None, keep=False):
        s.q = list(items); s.every = every; s.maxper = maxper; s.keep = keep
    def flush(s, t):
        while s.ready(1 << 30): t.item(s.q.pop(0))
    def ready(s, i):
        while s.q and isinstance(s.q[0], tuple) and s.q[0][0] == "at":
            if s.q[0][1] <= i: s.q.pop(0)
            else: return False
        return bool(s.q)

def stream(t, mf, frag_ops, pool, auxs, gap, look=6, pre=None, maxds=14):
    last = {}
    for i, (_, fr) in enumerate(mf):
        for f in fr: last[f] = i
    order = []
    for i, (_, fr) in enumerate(mf):
        for f in fr:
            if f not in [o[0] for o in order]: order.append((f, i))
    reg = dict(pre or {})
    order = [o for o in order if o[0] not in reg]
    pend = []
    def issue_one():
        if not pend:
            f, _ = order.pop(0)
            r = pool.pop(0); reg[f] = r
            for op in frag_ops(f):
                pend.append((op.format(r0=r, r1=r+1, r2=r+2, r3=r+3), f))
        op, f = pend.pop(0)
        t.lds(op, ("F", f)); return 4
    for i, (fmt, fr) in enumerate(mf):
        while any((f not in reg) for f in fr) or any(p[1] in fr for p in pend):
            issue_one()
        if i == 0:
            while (pend or (order and order[0][1] <= i + look and pool)) and len(t.ds) - t.ds_done < maxds: issue_one()
        tags = [("F", f) for f in fr if ("F", f) in t.ds]
        c = t.wait(None, tags) if tags else 0
        t.e(fmt.format(*[f"v[{reg[f]}:{reg[f]+3}]" for f in fr]))
        for f in set(fr):
            if last[f] == i and f not in (pre or {}):
                pool.append(reg[f])
        b = gap - c
        while b > 0 and (pend or (order and order[0][1] <= i + look and pool)) and len(t.ds) - t.ds_done < maxds:
            b -= issue_one()
        for a in auxs:
            n = 0
            while a.ready(i) and (b > 0 or a.every):
                if a.every is not None:
                    if i % a.every != 0 or n >= (a.maxper or 1): break
                elif a.maxper is not None and n >= a.maxper: break
                b -= t.item(a.q.pop(0)); n += 1
    for a in auxs:
        if not a.keep: a.flush(t)
```

```python
import sys, importlib
sys.path.insert(0, "gen3")
from emit import *
from layout import *

HEADER = open("interleave_layers__ssm_conv_s4d__dense_activation_mish__prompt.s.ref").read().split("; Override launch")[0]

def build(gens, order, path):
    e = E()
    infos = {}
    for g in gens:
        info = g(e)
        infos[info["name"]] = info
    out = HEADER
    for n in order:
        i = infos[n]
        out += f"; @launch kernel={n} grid=({i['grid']},1,1) block=({i['block']},1,1) lds={i['lds']}\n"
    out += '.amdgcn_target "amdgcn-amd-amdhsa--gfx950"\n.text\n'
    out += e.text()
    out += '.section .rodata,"a"\n'
    for n, i in infos.items():
        out += kd(n, i["vgpr"], i.get("sgpr", 96), i.get("accum"))
    open(path, "w").write(out)
    print("wrote", path, len(out), "bytes; nops inserted", e.nops)
    return infos
```

```python
import sys
from top import *
from prep import *
from main import *
PROF["on"] = len(sys.argv) > 2 and sys.argv[2] == "prof"
path = sys.argv[1] if len(sys.argv) > 1 else "m.s"
kw = eval(sys.argv[3]) if len(sys.argv) > 3 else {}
build([gen_prep, lambda e: gen_main(e, stop=kw.get("stop"), P=kw)], ["prep_kernel", "main_kernel"], path)
```
